```python
import torch

def _softmax(x, axis=-1):
    return torch.softmax(x, dim=axis)
def _gelu(x):
    return torch.nn.functional.gelu(x, approximate="tanh")
def _silu(x):
    return torch.nn.functional.silu(x)
def _sigmoid(x):
    return torch.sigmoid(x)
def _layernorm(x, axis=-1, eps=1e-5):
    m = x.mean(dim=axis, keepdim=True)
    v = x.var(dim=axis, keepdim=True, unbiased=False)
    return (x - m) / torch.sqrt(v + eps)
def _scatter_add(tgt, idx, src, axis=0):
    return tgt.clone().index_add_(axis, idx, src)
def _segment_sum(src, seg, n):
    out = torch.zeros((n,) + src.shape[1:], dtype=src.dtype)
    return out.index_add_(0, seg, src)
def _pad(x, pw):
    flat = tuple(v for pair in reversed(pw) for v in pair)
    return torch.nn.functional.pad(x, flat)

kernel_name = 'parallel_sum__linear_kernel_hedgehog__swiglu_ffn__prompt'

def setup_inputs():

    _w = (lambda a: (lambda t: t.to(torch.bfloat16) if t.is_floating_point() else t)(torch.as_tensor(a)))
    def _A_setup():
        B, S, D, H = 1, 2048, 512, 32
        Dh = D // H
        return {
            "x": _w((lambda *s: torch.randn(*s, dtype=torch.bfloat16) * 0.05)(B, S, D)),
            "wqkv": _w((lambda *s: torch.randn(*s, dtype=torch.bfloat16) * 0.4)(D, 3 * D)),
            "w_phi": _w((lambda *s: torch.randn(*s, dtype=torch.bfloat16) * 0.4)(H, Dh, Dh) * (Dh ** -0.5)),
            "wo": _w((lambda *s: torch.randn(*s, dtype=torch.bfloat16) * 0.1)(D, D)),
        }
    _A_in = _A_setup()

    def _B_setup():
        B, S, D, F = 1, 2048, 512, 1792
        return {
            "x": _w((lambda *s: torch.randn(*s, dtype=torch.bfloat16) * 0.05)(B, S, D)),
            "w_gate": _w((lambda *s: torch.randn(*s, dtype=torch.bfloat16) * 0.05)(D, F)),
            "w_up": _w((lambda *s: torch.randn(*s, dtype=torch.bfloat16) * 0.05)(D, F)),
            "w_down": _w((lambda *s: torch.randn(*s, dtype=torch.bfloat16) * 0.05)(F, D)),
        }
    _B_in = _B_setup()

    return {
        "A_x": _A_in["x"],
        "A_wqkv": _A_in["wqkv"],
        "A_w_phi": _A_in["w_phi"],
        "A_wo": _A_in["wo"],
        "B_x": _B_in["x"],
        "B_w_gate": _B_in["w_gate"],
        "B_w_up": _B_in["w_up"],
        "B_w_down": _B_in["w_down"],
    }

def reference(A_x, A_wqkv, A_w_phi, A_wo, B_x, B_w_gate, B_w_up, B_w_down):
    def _A_ref(x, wqkv, w_phi, wo):
        B, S, D = x.shape
        H = 32; Dh = D // H
        qkv = (lambda x, *d: x.permute(*d))((x @ wqkv).reshape(B, S, 3, H, Dh), 2, 0, 3, 1, 4)
        q, k, v = qkv[0], qkv[1], qkv[2]
        pq = torch.einsum("bhsd,hdf->bhsf", q, w_phi)
        pk = torch.einsum("bhsd,hdf->bhsf", k, w_phi)
        phi_q = torch.concatenate([_softmax(pq, axis=-1), _softmax(-pq, axis=-1)], axis=-1)
        phi_k = torch.concatenate([_softmax(pk, axis=-1), _softmax(-pk, axis=-1)], axis=-1)
        kv = torch.einsum("bhsf,bhsd->bhfd", phi_k, v)
        z  = torch.einsum("bhsf->bhf", phi_k)
        num = torch.einsum("bhqf,bhfd->bhqd", phi_q, kv)
        den = torch.einsum("bhqf,bhf->bhq", phi_q, z)[..., None] + 1e-6
        o = num / den
        return (lambda x, *d: x.permute(*d))(o, 0, 2, 1, 3).reshape(B, S, D) @ wo

    def _B_ref(x, w_gate, w_up, w_down):
        g = _silu(x @ w_gate)
        u = x @ w_up
        return (g * u) @ w_down

    x = A_x
    xn = _layernorm(x, axis=-1)
    return x + _A_ref(xn, A_wqkv, A_w_phi, A_wo) + _B_ref(xn, B_w_gate, B_w_up, B_w_down)
```

```python
class Asm:
    def __init__(self):
        self.lines = []
        self._uid = 0

    def __call__(self, text):
        for ln in text.strip("\n").split("\n"):
            self.lines.append("    " + ln.strip() if ln.strip() and not ln.strip().endswith(":") else ln.strip())

    def raw(self, text):
        self.lines.append(text)

    def label(self, name):
        self.lines.append(name + ":")

    def uid(self, stem="L"):
        self._uid += 1
        return "%s_%d" % (stem, self._uid)

    def text(self):
        return "\n".join(self.lines) + "\n"


def v(i, n=1):
    return "v%d" % i if n == 1 else "v[%d:%d]" % (i, i + n - 1)


def a(i, n=1):
    return "a%d" % i if n == 1 else "a[%d:%d]" % (i, i + n - 1)


def s(i, n=1):
    return "s%d" % i if n == 1 else "s[%d:%d]" % (i, i + n - 1)


def kernel_begin(A, name):
    A.raw(".globl %s" % name)
    A.raw(".p2align 8")
    A.raw(".type %s,@function" % name)
    A.label(name)


def descriptor(name, vgprs, sgprs=102, accum=None):
    if accum is None:
        accum = min(256, (vgprs + 3) // 4 * 4)
    return """.p2align 6
.amdhsa_kernel %s
  .amdhsa_next_free_vgpr %d
  .amdhsa_next_free_sgpr %d
  .amdhsa_accum_offset %d
  .amdhsa_group_segment_fixed_size 0
  .amdhsa_kernarg_size 88
  .amdhsa_user_sgpr_count 2
  .amdhsa_user_sgpr_kernarg_segment_ptr 1
  .amdhsa_system_sgpr_workgroup_id_x 1
  .amdhsa_float_denorm_mode_32 3
  .amdhsa_float_denorm_mode_16_64 3
.end_amdhsa_kernel
""" % (name, vgprs, sgprs, accum)


def srd(A, dst, base, nbytes):
    A("s_mov_b32 s%d, s%d" % (dst, base))
    A("s_and_b32 s%d, s%d, 0xffff" % (dst + 1, base + 1))
    A("s_mov_b32 s%d, 0x%x" % (dst + 2, nbytes))
    A("s_mov_b32 s%d, 0x00020000" % (dst + 3))
```

```python
import re

REG = re.compile(r"\b([vas])(\d+)\b|\b([vas])\[(\d+):(\d+)\]|\b(vcc|exec|m0|scc)\b")
TRANS = ("v_exp_f32", "v_log_f32", "v_rcp_f32", "v_rsq_f32", "v_sqrt_f32", "v_sin_f32", "v_cos_f32")


def regs_of(tok):
    out = []
    for m in REG.finditer(tok):
        if m.group(1):
            out.append(m.group(1) + m.group(2))
        elif m.group(3):
            out += [m.group(3) + str(i) for i in range(int(m.group(4)), int(m.group(5)) + 1)]
        else:
            out.append(m.group(6))
    return out


def split_ops(rest):
    ops, depth, cur = [], 0, ""
    for ch in rest:
        if ch in "[(":
            depth += 1
        if ch in "])":
            depth -= 1
        if ch == "," and depth == 0:
            ops.append(cur.strip())
            cur = ""
        else:
            cur += ch
    if cur.strip():
        ops.append(cur.strip())
    return ops


class Op:
    __slots__ = ("text", "mn", "kind", "defs", "uses", "tag", "cost", "srcc", "srcab", "dpp", "passes")

    def __init__(self, text, tag=None):
        self.text = text.strip()
        self.tag = tag
        parts = self.text.split(None, 1)
        mn = self.mn = parts[0]
        ops = split_ops(parts[1]) if len(parts) > 1 else []
        self.defs, self.uses, self.srcc, self.srcab = [], [], [], []
        self.dpp = "_dpp" in mn or "quad_perm" in self.text or "row_" in self.text
        self.passes = 0
        self.cost = 1
        R = [regs_of(o) for o in ops]
        flat = lambda l: [r for x in l for r in x]
        if mn.startswith("v_mfma"):
            self.kind = "mfma"
            self.passes = 8 if "32x32" in mn else 4
            self.defs = R[0]
            self.srcab = R[1] + R[2]
            self.srcc = R[3]
            self.uses = self.srcab + self.srcc
            self.cost = 2
        elif mn.startswith("ds_read"):
            self.kind = "dsr"
            self.defs, self.uses = R[0], flat(R[1:])
        elif mn.startswith("ds_"):
            self.kind = "dsw"
            self.uses = flat(R)
        elif mn.startswith("buffer_load") or mn.startswith("global_load"):
            if re.search(r"\blds\b", self.text) or "_lds_" in mn:
                self.kind = "dma"
                self.uses = flat(R) + ["m0"]
            else:
                self.kind = "vld"
                self.defs, self.uses = R[0], flat(R[1:])
        elif mn.startswith("buffer_store") or mn.startswith("global_store"):
            self.kind = "vst"
            self.uses = flat(R)
        elif mn.startswith("buffer_atomic") or mn.startswith("global_atomic"):
            self.kind = "vst"
            self.uses = flat(R)
            assert "sc0" not in self.text, "returning atomics are not modelled"
        elif mn.startswith("buffer_inv") or mn.startswith("buffer_wbl2"):
            self.kind = "vst"
        elif mn.startswith("v_cmp"):
            self.kind = "valu"
            self.defs, self.uses = R[0], flat(R[1:])
        elif mn.startswith("v_permlane") and "swap" in mn:
            self.kind = "valu"
            self.defs = R[0] + R[1]
            self.uses = R[0] + R[1]
        elif mn.startswith("v_"):
            self.kind = "valu"
            self.defs, self.uses = R[0], flat(R[1:])
            if mn.startswith(("v_fmac", "v_dot2c", "v_writelane", "v_pk_fmac")) or self.dpp:
                self.uses = self.uses + R[0]
            if mn.startswith(("v_cndmask",)) and len(ops) == 3:
                self.uses.append("vcc")
            if mn.startswith(TRANS):
                self.cost = 2
        elif mn in ("s_barrier", "s_nop", "s_waitcnt", "s_sleep", "s_setprio", "s_endpgm"):
            self.kind = mn
        elif mn.startswith("s_load") or mn.startswith("s_memtime") or mn.startswith("s_memrealtime"):
            self.kind = "smem"
            self.defs, self.uses = R[0], flat(R[1:])
        elif mn.startswith("s_cmp") or mn.startswith("s_bitcmp"):
            self.kind = "salu"
            self.defs, self.uses = ["scc"], flat(R)
        elif mn.startswith("s_cbranch") or mn == "s_branch":
            self.kind = "branch"
        elif mn.startswith("s_"):
            self.kind = "salu"
            self.defs, self.uses = R[0], flat(R[1:])
            if "saveexec" in mn:
                self.defs = self.defs + ["exec"]
        else:
            raise ValueError("unknown instruction " + text)
        self.cost = self._cost(len(ops))

    def _cost(self, nops):
        k = self.kind
        if k == "valu":
            if self.trans:
                return 8
            if nops >= 4 or self.mn.startswith(("v_fmac", "v_fmamk", "v_fmaak")):
                return 6
            if self.mn.startswith("v_cvt_pk") or "0x" in self.text or self.dpp:
                return 4.5
            return 4
        if k in ("dsr", "dsw"):
            return 2
        if k in ("vld", "vst", "dma"):
            return 12
        if k == "mfma":
            return 0
        return 0

    @property
    def trans(self):
        return self.mn.startswith(TRANS)


class WaitVM(object):
    kind = "waitvm"
    cost = 0

    def __init__(self, *tags):
        self.tags = set(tags)


class WaitLG(object):
    kind = "waitlg"
    cost = 0

    def __init__(self, *tags):
        self.tags = set(tags)


class Call(object):
    kind = "call"
    cost = 0

    def __init__(self, fn):
        self.fn = fn


def deadline(slot, what=""):
    def fn(S):
        print("  %s done at slot %d (deadline %d)" % (what, S.slot, slot))
        assert S.slot < slot, "%s emitted at slot %d, needed before %d" % (what, S.slot, slot)
    return Call(fn)


def mark(name):
    def fn(S):
        S.marks[name] = S.barriers
        print("  mark %s at slot %d" % (name, S.slot))
    return Call(fn)


def after_barrier(name):
    def fn(S):
        assert S.barriers > S.marks[name], "no barrier since " + name
    return Call(fn)


class Stream:
    def __init__(self, A):
        self.slot = -1
        self.barriers = 0
        self.marks = {}
        self.A = A
        self.vm = []
        self.lg = []
        self.smem = False
        self.hist = []
        self.pos = 0
        self.nops = 0
        self.count = 0

    def _raw(self, text, states=1):
        self.A(text)
        self.pos += states
        self.count += 1

    def _wait(self, vm=None, lg=None):
        parts = []
        if vm is not None and vm < len(self.vm):
            vm = min(vm, 63)
            parts.append("vmcnt(%d)" % vm)
            self.vm = self.vm[len(self.vm) - vm:] if vm else []
        if lg is not None and (lg < len(self.lg) or (self.smem and lg == 0)):
            if self.smem:
                lg = 0
            lg = min(lg, 15)
            parts.append("lgkmcnt(%d)" % lg)
            self.lg = self.lg[len(self.lg) - lg:] if lg else []
            if lg == 0:
                self.smem = False
        if parts:
            self._raw("s_waitcnt " + " ".join(parts))

    def fence(self, vm=True):
        self._wait(vm=0 if vm else None, lg=0)

    def pad(self, n=16):
        self._nop(n)

    def _nop(self, n):
        self.nops += n
        while n > 0:
            k = min(n, 16)
            self._raw("s_nop %d" % (k - 1), k)
            n -= k

    def _need(self, queue, regs):
        last = -1
        for i, o in enumerate(queue):
            if o.defs and not regs.isdisjoint(o.defs):
                last = i
        return None if last < 0 else len(queue) - 1 - last

    def _hazard(self, op):
        need = 0
        uses, defs = set(op.uses), set(op.defs)
        touched = uses | defs
        is_valu = op.kind == "valu"
        is_mem = op.kind in ("dsr", "dsw", "vld", "vst", "dma")
        for p, at in reversed(self.hist):
            dist = self.pos - at - 1
            if dist >= 20:
                break
            w = 0
            pd = set(p.defs)
            if p.kind == "mfma":
                long_, mid = (12, 10) if p.passes == 8 else (8, 6)
                if op.kind == "mfma":
                    if not pd.isdisjoint(op.srcab):
                        w = max(w, long_)
                    if not pd.isdisjoint(op.srcc) and not (op.srcc == p.defs and op.passes == p.passes):
                        w = max(w, mid)
                    if not pd.isdisjoint(op.defs) and not (op.srcc == p.defs and op.defs == p.defs):
                        w = max(w, long_)
                elif (is_valu or is_mem) and not pd.isdisjoint(touched):
                    w = max(w, long_)
                if is_valu and not set(p.srcc).isdisjoint(defs):
                    w = max(w, 7 if p.passes == 8 else 3)
            elif p.kind == "valu":
                vd = {r for r in pd if r[0] in "va" and r != "vcc"}
                sd = pd - vd
                if op.kind == "mfma" and not vd.isdisjoint(uses):
                    w = max(w, 2)
                if op.kind == "mfma" and "exec" in sd:
                    w = max(w, 4)
                if is_valu:
                    if p.trans and not op.trans and not vd.isdisjoint(uses):
                        w = max(w, 1)
                    if p.trans and op.trans and not vd.isdisjoint(uses):
                        w = max(w, 1)
                    if (op.mn.startswith("v_permlane") or op.dpp) and not vd.isdisjoint(uses):
                        w = max(w, 2)
                    if op.mn.startswith(("v_readfirstlane", "v_readlane")) and not vd.isdisjoint(uses):
                        w = max(w, 1)
                    if not sd.isdisjoint(uses):
                        w = max(w, 4 if op.mn.startswith(("v_readlane", "v_writelane")) else 2)
                if op.kind in ("vld", "vst", "dma") and not sd.isdisjoint(uses):
                    w = max(w, 5)
                if op.kind in ("salu", "smem") and not sd.isdisjoint(uses):
                    w = max(w, 1)
            elif p.kind == "vst":
                if ("x4" in p.mn or "x3" in p.mn) and defs and not set(p.uses).isdisjoint(defs):
                    w = max(w, 2)
            elif p.kind == "salu":
                if "m0" in pd and op.kind == "dma":
                    w = max(w, 1)
            need = max(need, w - dist)
        return need

    def emit(self, op, tag=None):
        if isinstance(op, str):
            op = Op(op, tag)
        if op.kind == "call":
            op.fn(self)
            return
        if op.kind == "s_barrier":
            self.barriers += 1
        if op.kind == "waitvm":
            last = -1
            for i, o in enumerate(self.vm):
                if not op.tags or o.tag in op.tags:
                    last = i
            if last >= 0:
                self._wait(vm=len(self.vm) - 1 - last)
            return
        if op.kind == "waitlg":
            last = -1
            for i, o in enumerate(self.lg):
                if not op.tags or o.tag in op.tags:
                    last = i
            if last >= 0:
                self._wait(lg=len(self.lg) - 1 - last)
            return
        touched = set(op.uses) | set(op.defs)
        nv = self._need(self.vm, touched)
        nl = self._need(self.lg, touched)
        if self.smem and any(r in touched for r in self.smem_regs):
            nl = 0
        if nv is not None or nl is not None:
            self._wait(vm=nv, lg=nl)
        h = self._hazard(op)
        if h > 0:
            self._nop(h)
        at = self.pos
        states = 1
        if op.kind == "s_nop":
            states = int(op.text.split()[1]) + 1
        self._raw(op.text, states)
        self.hist.append((op, at))
        if len(self.hist) > 40:
            self.hist = self.hist[-30:]
        if op.kind in ("dsr", "dsw"):
            self.lg.append(op)
        elif op.kind in ("vld", "vst", "dma"):
            self.vm.append(op)
            assert len(self.vm) <= 63, "too many vector-memory ops in flight for vmcnt"
        elif op.kind == "smem":
            if not self.smem:
                self.smem_regs = set()
            self.smem = True
            self.smem_regs |= set(op.defs)

    def __call__(self, text, tag=None):
        for ln in text.strip().split("\n"):
            ln = ln.split(";")[0].strip()
            if ln:
                self.emit(ln, tag)

    def ops(self, ops):
        for o in ops:
            self.emit(o)

    def label(self, name):
        self.A.label(name)

    def clone(self):
        T = Stream(self.A)
        T.vm, T.lg, T.hist = list(self.vm), list(self.lg), list(self.hist)
        T.smem, T.pos = self.smem, self.pos
        T.barriers, T.marks = self.barriers, dict(self.marks)
        if self.smem:
            T.smem_regs = set(self.smem_regs)
        return T


def O(text, tag=None):
    out = []
    for ln in text.strip().split("\n"):
        ln = ln.split(";")[0].strip()
        if ln:
            out.append(Op(ln, tag))
    return out


class Filler:
    def __init__(self):
        self.q = []

    def add(self, ops, start=0):
        for o in ops:
            self.q.append((start, o))

    def cost(self):
        return sum(self._c(o) for _, o in self.q)

    @staticmethod
    def _c(o):
        if isinstance(o, list):
            return sum(x.cost for x in o)
        return o.cost

    def pour(self, S, slot, budget):
        first = True
        while self.q:
            start, o = self.q[0]
            if start > slot:
                break
            if self._c(o) > budget and not first:
                break
            if budget <= 0 and self._c(o) > 0:
                break
            first = False
            self.q.pop(0)
            if isinstance(o, list):
                S.ops(o)
            else:
                S.emit(o)
            budget -= self._c(o)
        return budget

    def drain(self, S):
        self.pour(S, 1 << 30, 1 << 30)
```

```python
import sys
sys.path.insert(0, "gen")
from asmlib import Asm, kernel_begin, descriptor
from sched import Stream, Op, O, Filler, WaitVM, WaitLG, deadline, mark, after_barrier

NAME = "parallel_sum__linear_kernel_hedgehog__swiglu_ffn__prompt"
LOG2E = 0x3FB8AA3B
NLOG2E = 0xBFB8AA3B

HF_OFF = 0
KVP_OFF = 16 << 20
WS_BYTES = 32 << 20

sX, sWA, sWF, sWS, sPH, sDBG, sWD, sWO, sOUT = 28, 32, 36, 40, 44, 48, 52, 56, 60
sW, sTG, sCH, sI, sJJ, sTY, sM0 = 64, 65, 66, 67, 68, 69, 70
sXO0, sXO1, sA0, sA1, sF0, sF1, sH0, sH1, sH2, sKV, sKV2 = 71, 72, 73, 74, 75, 76, 77, 78, 79, 80, 81
sMASK = 82
sCL, sCN, sHI = 84, 85, 86
sT = 88

vRA, vRF, vRH = 2, 4, 8
vDA, vDF, vDH, vL16, vPW, vSG = 10, 11, 12, 13, 14, 15
vT = 16
vWB = 40
NWB = 6
ACC = [64, 80, 96, 112]
XF = 128

RING = 6
LDS_RING = 65536
PLANE = 2112
LDS_VF = 33792
LDS_AF = 33792
LDS_PHI = 50176
DIST = 3
GAP = 24


def vr(i, n):
    return "v[%d:%d]" % (i, i + n - 1)


def srd(S, dst, base, nbytes):
    S("s_mov_b32 s%d, s%d" % (dst, base))
    S("s_and_b32 s%d, s%d, 0xffff" % (dst + 1, base + 1))
    S("s_mov_b32 s%d, 0x%x" % (dst + 2, nbytes))
    S("s_mov_b32 s%d, 0x00020000" % (dst + 3))


def load_args(S, end_label):
    S("s_cmp_ge_u32 s2, 256")
    S.A("s_cbranch_scc1 %s" % end_label)
    S("""
    s_load_dwordx16 s[4:19], s[0:1], 0
    s_load_dwordx4 s[20:23], s[0:1], 64
    s_load_dwordx2 s[24:25], s[0:1], 80
    v_lshrrev_b32 v1, 6, v0
    v_and_b32 v0, 63, v0
    v_readfirstlane_b32 s%d, v1
    """ % sW)


def lane_fields(S, t):
    S("""
    v_bfe_u32 v{0}, v0, 2, 2
    v_and_b32 v{1}, 3, v0
    v_lshlrev_b32 v{1}, 3, v{1}
    v_bfe_u32 v{2}, v0, 4, 1
    v_lshrrev_b32 v{3}, 5, v0
    v_bfe_u32 v{4}, v0, 3, 1
    v_lshlrev_b32 v{4}, 6, v{4}
    """.format(t, t + 1, t + 2, t + 3, t + 4))


def epi_silu(acc, tmp, soff, imm, flags):
    g, u = acc, acc + 8
    ops = []
    for r in range(8):
        ops += O("v_mul_f32 v%d, s%d, v%d" % (tmp + r, sCN, g + r))
    for r in range(8):
        ops += O("v_exp_f32 v%d, v%d" % (tmp + r, tmp + r))
        ops += O("v_mul_f32 v%d, v%d, v%d" % (u + r, g + r, u + r))
    for r in range(8):
        ops += O("v_add_f32 v%d, 1.0, v%d" % (tmp + r, tmp + r))
    for r in range(8):
        ops += O("v_rcp_f32 v%d, v%d" % (tmp + r, tmp + r))
        if r:
            ops += O("v_mul_f32 v%d, v%d, v%d" % (u + r - 1, u + r - 1, tmp + r - 1))
    ops += O("v_cvt_pk_bf16_f32 v%d, v%d, v%d" % (g, u, u + 1))
    ops += O("v_mul_f32 v%d, v%d, v%d" % (u + 7, u + 7, tmp + 7))
    for r in range(1, 4):
        ops += O("v_cvt_pk_bf16_f32 v%d, v%d, v%d" % (g + r, u + 2 * r, u + 2 * r + 1))
    ops += O("buffer_store_dwordx4 %s, v%d, s[%d:%d], s%d offen offset:%d %s" % (vr(g, 4), vL16, sWS, sWS + 3, soff, imm, flags), "hst")
    return ops


def epi_softmax(p, tmp, imm_pos, imm_neg):
    a, b, c, d = tmp, tmp + 1, tmp + 2, tmp + 3
    ops = []
    for base, m in ((p, a), (p + 8, b)):
        ops += O("v_max3_f32 v%d, v%d, v%d, v%d" % (m, base, base + 1, base + 2))
    for k in (3, 5):
        for base, m in ((p, a), (p + 8, b)):
            ops += O("v_max3_f32 v%d, v%d, v%d, v%d" % (m, m, base + k, base + k + 1))
    for base, m in ((p, a), (p + 8, b)):
        ops += O("v_max_f32 v%d, v%d, v%d" % (m, m, base + 7))
    ops += O("""
    v_permlane32_swap_b32 v{a}, v{b}
    v_max_f32 v{a}, v{a}, v{b}
    v_mul_f32 v{a}, s{cn}, v{a}
    v_mov_b32 v{b}, v{a}
    v_permlane32_swap_b32 v{a}, v{b}
    """.format(a=a, b=b, cn=sCN))
    for r in range(16):
        ops += O("v_fma_f32 v%d, v%d, s%d, v%d" % (p + r, p + r, sCL, a if r < 8 else b))
    for r in range(16):
        ops += O("v_exp_f32 v%d, v%d" % (p + r, p + r))
        if r in (2, 10):
            ops += O("v_add_f32 v%d, v%d, v%d" % (c if r < 8 else d, p + r - 2, p + r - 1))
        elif r not in (0, 1, 9):
            ops += O("v_add_f32 v%d, v%d, v%d" % (c if r <= 8 else d, c if r <= 8 else d, p + r - 1))
    ops += O("""
    v_add_f32 v{d}, v{d}, v{last}
    v_permlane32_swap_b32 v{c}, v{d}
    v_add_f32 v{c}, v{c}, v{d}
    v_rcp_f32 v{c}, v{c}
    v_mov_b32 v{d}, v{c}
    v_permlane32_swap_b32 v{c}, v{d}
    """.format(c=c, d=d, last=p + 15))
    for half, s_, imm in ((0, c, imm_pos), (1, d, imm_neg)):
        base = p + 8 * half
        for r in range(8):
            ops += O("v_mul_f32 v%d, v%d, v%d" % (base + r, base + r, s_))
        for r in range(4):
            ops += O("v_cvt_pk_bf16_f32 v%d, v%d, v%d" % (base + r, base + 2 * r, base + 2 * r + 1))
        ops += O("ds_write_b128 v%d, %s offset:%d" % (vPW, vr(base, 4), imm))
    return ops


def pack8(dst, src):
    return [Op("v_cvt_pk_bf16_f32 v%d, v%d, v%d" % (dst + r, src + 2 * r, src + 2 * r + 1)) for r in range(8)]


class Round:
    def __init__(self, kind, soff, accs, swap=False):
        self.kind, self.soff, self.accs, self.swap = kind, soff, accs, swap
        self.nchunks = 8 if kind == "dbl" else 4


def chunk_dma(rnd, c, gc):
    slot = (gc + 4) % RING
    out = []
    for n in range(2):
        if rnd.kind == "kqv":
            goff, va, sr = (128 * c + 8 * n) * 3072, vDA, sWA
        elif rnd.kind == "dbl":
            goff, va, sr = (64 * c + 8 * n) * 3584, vDF, sWF
        else:
            goff, va, sr = (128 * c + 16 * n) * 3584, vDH, sWF
        out.append(O("""
        s_add_u32 m0, s%d, %d
        s_add_u32 s%d, s%d, %d
        """ % (sM0, LDS_RING + slot * 16384 + n * 1024, sT, rnd.soff, goff)) +
                   O("buffer_load_dwordx4 v%d, s[%d:%d], s%d offen lds" % (va, sr, sr + 3, sT), "c%d" % gc))
    return out


def build_slots(rounds):
    slots, chunks = [], []
    for rnd in rounds:
        base = len(chunks)
        for c in range(rnd.nchunks):
            chunks.append((rnd, c))
        for ks in range(32):
            for u in range(len(rnd.accs)):
                per = 32 // rnd.nchunks
                gc = base + ks // per
                k = ks % per
                off = ((gc + 4) % RING) * 16384
                if rnd.kind == "kqv":
                    reg, off, step = vRA, off + k * 2048, 512
                elif rnd.kind == "dbl":
                    reg, off, step = vRF + 2 * u, off + k * 2048, 512
                else:
                    reg, off, step = vRH, off + k * 1024, 256
                reg, off = reg + off // 65536, off % 65536
                slots.append(dict(gc=gc, reg=reg, off=off, step=step, acc=rnd.accs[u], ks=ks, swap=rnd.swap,
                                  first=(k == 0 and u == 0)))
    return slots, chunks


def frag_reads(sl, g):
    b = vWB + (g % NWB) * 4
    return O("ds_read_b64_tr_b16 %s, v%d offset:%d" % (vr(b, 2), sl["reg"], sl["off"])) + \
        O("ds_read_b64_tr_b16 %s, v%d offset:%d" % (vr(b + 2, 2), sl["reg"], sl["off"] + sl["step"]))


def main_loop(S, rounds, fill, extra_dma):
    slots, chunks = build_slots(rounds)
    n = len(slots)
    issued = 2
    dq = Filler()
    for g in range(DIST):
        S.ops(frag_reads(slots[g], g))
    for g, sl in enumerate(slots):
        S.slot = g
        b = vWB + (g % NWB) * 4
        x = XF + 4 * sl["ks"]
        a_, b_ = (vr(x, 4), vr(b, 4)) if sl["swap"] else (vr(b, 4), vr(x, 4))
        acc = vr(sl["acc"], 16)
        S("v_mfma_f32_32x32x16_bf16 %s, %s, %s, %s" % (acc, a_, b_, acc if sl["ks"] else "0"))
        nx = g + DIST
        if nx < n:
            if slots[nx]["first"]:
                c = slots[nx]["gc"]
                dq.drain(S)
                S.emit(WaitVM("c%d" % c))
                S("s_barrier")
                hi = min(len(chunks), c - 2 + RING + 1)
                for gc in range(issued, hi):
                    for grp in chunk_dma(chunks[gc][0], chunks[gc][1], gc):
                        dq.add([grp])
                issued = max(issued, hi)
                for grp in extra_dma.pop(c, []):
                    dq.add([grp])
            S.ops(frag_reads(slots[nx], nx))
        budget = GAP
        if dq.q:
            budget = GAP - 12
            dq.pour(S, g, 12)
        fill.pour(S, g, budget)


def k1_prologue(S):
    load_args(S, "L_k1_end")
    S("""
    s_and_b32 s{t}, s2, 7
    s_lshr_b32 s{t1}, s2, 3
    s_lshr_b32 s{i}, s{t}, 2
    s_lshl_b32 s{i}, s{i}, 3
    s_lshr_b32 s{t2}, s{t1}, 2
    s_add_u32 s{i}, s{i}, s{t2}
    s_bfe_u32 s{ty}, s{t1}, 0x10001
    s_and_b32 s{jj}, s{t}, 3
    s_lshl_b32 s{jj}, s{jj}, 1
    s_and_b32 s{t2}, s{t1}, 1
    s_add_u32 s{jj}, s{jj}, s{t2}
    s_and_b32 s{tg}, s{w}, 3
    s_lshr_b32 s{ch}, s{w}, 2
    s_lshl_b32 s{m0}, s{w}, 11
    s_lshl_b32 s{xo0}, s{i}, 3
    s_add_u32 s{xo0}, s{xo0}, s{w}
    s_lshl_b32 s{xo0}, s{xo0}, 14
    s_add_u32 s{xo1}, s{xo0}, 8192
    s_mov_b32 s{cl}, {L}
    s_mov_b32 s{cn}, {N}
    s_mov_b32 s{hi}, 0xffff0000
    """.format(t=sT, t1=sT + 1, t2=sT + 2, i=sI, ty=sTY, jj=sJJ, tg=sTG, ch=sCH, w=sW, m0=sM0, xo0=sXO0, xo1=sXO1,
               cl=sCL, cn=sCN, hi=sHI, L=hex(LOG2E), N=hex(NLOG2E)))
    S("""
    v_lshrrev_b32 v{a}, 3, v0
    v_and_b32 v{b}, 7, v0
    v_lshlrev_b32 v1, 10, v{a}
    v_lshl_or_b32 v1, v{b}, 4, v1
    """.format(a=vT, b=vT + 1))
    srd(S, sX, 4, 2048 * 1024)
    for g in range(2):
        for p in range(8):
            S("buffer_load_dwordx4 %s, v1, s[%d:%d], s%d offen offset:%d" % (vr(64 + 32 * g + 4 * p, 4), sX, sX + 3, sXO0 + g, p * 128))
    srd(S, sWA, 6, 512 * 3072)
    S("s_cmp_eq_u32 s%d, 0" % sCH)
    S("s_cselect_b32 s%d, s14, s16" % sWF)
    S("s_cselect_b32 s%d, s15, s17" % (sWF + 1))
    S("s_and_b32 s%d, s%d, 0xffff" % (sWF + 1, sWF + 1))
    S("s_mov_b32 s%d, %d" % (sWF + 2, 512 * 3584))
    S("s_mov_b32 s%d, 0x00020000" % (sWF + 3))
    S("""
    v_bfe_u32 v{c}, v0, 4, 1
    v_lshlrev_b32 v{c}, 2, v{c}
    v_xor_b32 v{c}, v{c}, v{b}
    v_mul_u32_u24 v{da}, 3072, v{a}
    v_lshl_add_u32 v{da}, v{c}, 4, v{da}
    s_lshl_b32 s{t}, s{ch}, 1
    v_xor_b32 v{c}, s{t}, v{c}
    v_mul_u32_u24 v{df}, 3584, v{a}
    v_lshl_add_u32 v{df}, v{c}, 4, v{df}
    v_lshrrev_b32 v{c}, 2, v0
    v_mul_u32_u24 v{dh}, 3584, v{c}
    v_and_b32 v{c}, 3, v0
    v_xor_b32 v{c}, s{t}, v{c}
    v_lshl_add_u32 v{dh}, v{c}, 4, v{dh}
    s_mul_i32 s{a0}, s{w}, {w16}
    s_lshl_b32 s{t}, s{jj}, 7
    s_add_u32 s{a0}, s{a0}, s{t}
    s_xor_b32 s{t}, s{ty}, 1
    s_lshl_b32 s{t}, s{t}, 10
    s_add_u32 s{a0}, s{a0}, s{t}
    s_add_u32 s{a1}, s{a0}, 1024
    """.format(a=vT, b=vT + 1, c=vT + 2, da=vDA, df=vDF, dh=vDH, t=sT, ch=sCH, w=sW, jj=sJJ, ty=sTY, a0=sA0, a1=sA1,
               w16=16 * 3072))
    r0 = Round("kqv", sA0, [0])
    for c in range(2):
        for grp in chunk_dma(r0, c, c):
            S.ops(grp)
    srd(S, sWS, 24, WS_BYTES)
    srd(S, sPH, 8, 32 * 512)
    srd(S, sDBG, 22, 256)
    S("""
    s_lshl_b32 s{t}, s{i}, 2
    s_add_u32 s{t}, s{t}, s{tg}
    s_mul_i32 s{h0}, s{t}, {hf}
    s_mul_i32 s{f0}, s{tg}, {r16}
    v_lshlrev_b32 v{l16}, 4, v0
    """.format(t=sT, i=sI, tg=sTG, h0=sH0, hf=144 * 1024, f0=sF0, r16=16 * 3584, l16=vL16))
    t = vT + 3
    lane_fields(S, t)
    r, c8, g1, half, sw = t, t + 1, t + 2, t + 3, t + 4
    row, e = vT + 8, vT + 9
    S("""
    v_lshl_add_u32 v{row}, v{half}, 3, v{r}
    s_lshl_b32 s{t}, s{ch}, 6
    v_lshl_or_b32 v{e}, v{g1}, 5, s{t}
    v_xor_b32 v{e}, v{e}, v{sw}
    v_add_u32 v{e}, v{e}, v{c8}
    v_lshl_add_u32 v{ra}, v{row}, 7, v{e}
    v_add_u32 v{ra}, 0x10000, v{ra}
    v_add_u32 v{ra1}, 0x10000, v{ra}
    v_lshlrev_b32 v{e}, 13, v{g1}
    v_add_u32 v{rf}, v{ra}, v{e}
    v_add_u32 v{rf1}, 0x10000, v{rf}
    v_xor_b32 v{rf2}, 32, v{rf}
    v_xor_b32 v{rf3}, 32, v{rf1}
    v_xor_b32 v{rh}, s{ch}, v{g1}
    v_lshlrev_b32 v{rh}, 5, v{rh}
    v_add3_u32 v{rh}, v{rh}, v{e}, v{c8}
    v_lshl_add_u32 v{rh}, v{row}, 6, v{rh}
    v_add_u32 v{rh}, 0x10000, v{rh}
    v_add_u32 v{rh1}, 0x10000, v{rh}
    v_lshlrev_b32 v{sg}, 15, v{g1}
    v_lshl_or_b32 v{sg}, v{g1}, 31, v{sg}
    """.format(row=row, e=e, half=half, r=r, g1=g1, sw=sw, c8=c8, t=sT, ch=sCH, ra=vRA, ra1=vRA + 1, rf=vRF, rf1=vRF + 1,
               rf2=vRF + 2, rf3=vRF + 3, rh=vRH, rh1=vRH + 1, sg=vSG))
    xw = vT + 10
    S("""
    s_lshl_b32 s{t}, s{w}, 14
    v_xor_b32 v{xw}, v{a}, v{b}
    v_lshlrev_b32 v{xw}, 4, v{xw}
    v_lshl_add_u32 v{xw}, v{a}, 10, v{xw}
    v_add_u32 v{xw}, s{t}, v{xw}
    """.format(t=sT, w=sW, xw=xw, a=vT, b=vT + 1))
    s0, s1, q0, q1 = vT + 12, vT + 13, vT + 14, vT + 15
    for g in range(2):
        raw, un = 64 + 32 * g, 128 + 64 * g
        for d in range(32):
            lo, hi = un + 2 * d, un + 2 * d + 1
            S("v_lshlrev_b32 v%d, 16, v%d" % (lo, raw + d))
            S("v_and_b32 v%d, s%d, v%d" % (hi, sHI, raw + d))
            if d == 0:
                S("v_mov_b32 v%d, v%d" % (s0, lo))
                S("v_mov_b32 v%d, v%d" % (s1, hi))
                S("v_mul_f32 v%d, v%d, v%d" % (q0, lo, lo))
                S("v_mul_f32 v%d, v%d, v%d" % (q1, hi, hi))
            else:
                S("v_add_f32 v%d, v%d, v%d" % (s0, s0, lo))
                S("v_add_f32 v%d, v%d, v%d" % (s1, s1, hi))
                S("v_fmac_f32 v%d, v%d, v%d" % (q0, lo, lo))
                S("v_fmac_f32 v%d, v%d, v%d" % (q1, hi, hi))
        S("v_add_f32 v%d, v%d, v%d" % (s0, s0, s1))
        S("v_add_f32 v%d, v%d, v%d" % (q0, q0, q1))
        for ctl in ("quad_perm:[1,0,3,2]", "quad_perm:[2,3,0,1]", "row_half_mirror"):
            S("v_add_f32_dpp v%d, v%d, v%d %s row_mask:0xf bank_mask:0xf" % (s0, s0, s0, ctl))
            S("v_add_f32_dpp v%d, v%d, v%d %s row_mask:0xf bank_mask:0xf" % (q0, q0, q0, ctl))
        S("""
        v_mul_f32 v{s0}, 0x3b000000, v{s0}
        v_mul_f32 v{q0}, 0x3b000000, v{q0}
        v_fma_f32 v{q0}, -v{s0}, v{s0}, v{q0}
        v_max_f32 v{q0}, 0, v{q0}
        v_add_f32 v{q0}, 0x3727c5ac, v{q0}
        v_rsq_f32 v{q0}, v{q0}
        v_mul_f32 v{s0}, -v{s0}, v{q0}
        """.format(s0=s0, q0=q0).replace("v_mul_f32 v%d, -v" % s0, "v_mul_f32_e64 v%d, -v" % s0))
        for p in range(8):
            for d in range(4 * p, 4 * p + 4):
                lo, hi = un + 2 * d, un + 2 * d + 1
                S("v_fma_f32 v%d, v%d, v%d, v%d" % (lo, lo, q0, s0))
                S("v_fma_f32 v%d, v%d, v%d, v%d" % (hi, hi, q0, s0))
                S("v_cvt_pk_bf16_f32 v%d, v%d, v%d" % (raw + d, lo, hi))
            S("ds_write_b128 v%d, %s offset:%d" % (xw, vr(raw + 4 * p, 4), g * 8192 + (p ^ g) * 128))
    fa = vT
    S("""
    v_and_b32 v{m}, 31, v0
    v_lshrrev_b32 v{h}, 5, v0
    v_and_b32 v{e}, 15, v0
    v_xor_b32 v{e}, v{e}, v{h}
    v_lshlrev_b32 v{e}, 4, v{e}
    s_lshl_b32 s{t}, s{tg}, 5
    v_add_u32 v{m}, s{t}, v{m}
    v_lshl_add_u32 v{fa}, v{m}, 10, v{e}
    """.format(m=vT + 8, h=vT + 9, e=vT + 11, t=sT, tg=sTG, fa=fa))
    for k in range(1, 8):
        S("v_xor_b32 v%d, %d, v%d" % (fa + k, 32 * k, fa))
    S.emit(WaitLG())
    S.emit(WaitVM("c0"))
    S("s_barrier")
    for s_ in range(32):
        S("ds_read_b128 %s, v%d offset:%d" % (vr(XF + 4 * s_, 4), fa + (s_ & 7), (s_ >> 3) * 256))


def phi_setup():
    return [O("""
    s_lshr_b32 s{t}, s{m0}, 1
    s_add_u32 m0, s{t}, {base}
    s_lshl_b32 s{t}, s{jj}, 1
    s_add_u32 s{t}, s{t}, s{ch}
    s_lshl_b32 s{t}, s{t}, 10
    """.format(t=sT, m0=sM0, base=LDS_PHI, jj=sJJ, ch=sCH)) +
            O("buffer_load_dwordx4 v%d, s[%d:%d], s%d offen lds" % (vL16, sPH, sPH + 3, sT), "phi")]


def phi_frags(dst, t):
    ops = O("""
    v_bfe_u32 v{a}, v0, 2, 2
    v_lshrrev_b32 v{b}, 5, v0
    v_lshl_add_u32 v{a}, v{b}, 2, v{a}
    v_and_b32 v{b}, 3, v0
    v_lshlrev_b32 v{b}, 3, v{b}
    v_lshl_add_u32 v{a}, v{a}, 5, v{b}
    s_lshr_b32 s{s}, s{m0}, 1
    s_add_u32 s{s}, s{s}, {base}
    v_add_u32 v{a}, s{s}, v{a}
    """.format(a=t, b=t + 1, s=sT + 1, m0=sM0, base=LDS_PHI))
    ops.append(WaitVM("phi"))
    for hh in range(2):
        for rd in range(2):
            ops += O("ds_read_b64_tr_b16 %s, v%d offset:%d" % (vr(dst + 4 * hh + 2 * rd, 2), t, hh * 512 + rd * 256))
    for k in range(8):
        ops += O("v_xor_b32 v%d, v%d, v%d" % (dst + k, vSG, dst + k))
    return ops


def featmap(fill, src, pbuf, start, imm):
    vPHI, vKB, tmp = vT + 4, vT + 12, vT + 20
    fill.add(phi_frags(vPHI, vT), start - 12)
    fill.add(pack8(vKB, src), start)
    for hh in range(2):
        fill.add(O("v_mfma_f32_32x32x16_bf16 %s, %s, %s, 0" % (vr(pbuf[hh], 16), vr(vPHI + 4 * hh, 4), vr(vKB + 4 * hh, 4))), start + 3)
    for hh in range(2):
        fill.add(epi_softmax(pbuf[hh], tmp, imm(hh, 0), imm(hh, 1)), start + 6)


def k1_tk(S, hflags):
    S("""
    s_add_u32 s{t}, s{jj}, 16
    s_lshl_b32 s{t}, s{t}, 7
    s_lshl_b32 s{f1}, s{f0}, 1
    s_add_u32 s{f0}, s{f0}, s{t}
    s_lshl_b32 s{t}, s{jj}, 6
    s_add_u32 s{t}, s{t}, {l24}
    s_add_u32 s{f1}, s{f1}, s{t}
    s_lshl_b32 s{t}, s{jj}, 1
    s_add_u32 s{t}, s{t}, s{ch}
    s_lshl_b32 s{t1}, s{t}, 10
    s_add_u32 s{h1}, s{h0}, s{t1}
    s_add_u32 s{h1}, s{h1}, {k96}
    s_lshl_b32 s{t1}, s{t}, 11
    s_add_u32 s{h0}, s{h0}, s{t1}
    s_add_u32 s{h0}, s{h0}, {k64}
    s_lshl_b32 s{t}, s{jj}, 4
    s_add_u32 s{t}, s{t}, s{i}
    s_mul_i32 s{kv}, s{t}, 8704
    s_add_u32 s{kv}, s{kv}, {kvp}
    s_add_u32 s{kv2}, s{kv}, 4352
    v_and_b32 v{a}, 31, v0
    v_lshrrev_b32 v{b}, 5, v0
    s_lshl_b32 s{t}, s{tg}, 5
    v_add_u32 v{a}, s{t}, v{a}
    v_lshlrev_b32 v{a}, 4, v{a}
    v_mul_u32_u24 v{b}, {pl2}, v{b}
    s_mul_i32 s{t}, s{ch}, {pl8}
    v_add3_u32 v{pw}, v{a}, v{b}, s{t}
    """.format(t=sT + 1, t1=sT + 2, jj=sJJ, ch=sCH, tg=sTG, i=sI, f0=sF0, f1=sF1, h0=sH0, h1=sH1, kv=sKV, kv2=sKV2,
               l24=24 * 128, k96=96 * 1024, k64=64 * 1024, kvp=KVP_OFF, a=vT + 8, b=vT + 9, pw=vPW, pl2=2 * PLANE, pl8=8 * PLANE))
    A0, A1, A2, A3 = ACC
    rounds = [Round("kqv", sA0, [A0]), Round("kqv", sA1, [A1], swap=True), Round("dbl", sF0, [A0, A2]), Round("half", sF1, [A1])]
    fill = Filler()
    vPHI, vKB, tmp = vT + 4, vT + 12, vT + 20
    imm = lambda hh, part: (hh * 4 + part) * PLANE
    fill.add(phi_frags(vPHI, vT), 20)
    fill.add(pack8(vKB, A0), 34)
    for hh, p in ((0, A2), (1, A3)):
        fill.add(O("v_mfma_f32_32x32x16_bf16 %s, %s, %s, 0" % (vr(p, 16), vr(vPHI + 4 * hh, 4), vr(vKB + 4 * hh, 4))), 36)
    fill.add(epi_softmax(A2, tmp, imm(0, 0), imm(0, 1)) + [deadline(65, "softmax0")], 38)
    fill.add(epi_softmax(A3, tmp, imm(1, 0), imm(1, 1)), 38)
    vV, va = vT + 4, vT
    fill.add(O("""
    s_add_u32 s{t}, s{m0}, {vf}
    v_add_u32 v{va}, s{t}, v{l16}
    """.format(t=sT + 1, m0=sM0, vf=LDS_VF, va=va, l16=vL16)), 66)
    fill.add(pack8(vV, A1), 66)
    for t in range(2):
        fill.add(O("ds_write_b128 v%d, %s offset:%d" % (va, vr(vV + 4 * t, 4), t * 1024)), 66)
    fill.add([WaitLG(), mark("kvin")], 66)
    KV0 = 94
    pa, vb, ones, sa = vT, vT + 1, vT + 2, vT + 3
    fa, fb = vT + 4, vT + 12
    fill.add(O("""
    s_and_b32 s{hh}, s{tg}, 1
    s_lshl_b32 s{t}, s{ch}, 1
    s_add_u32 s{t}, s{t}, s{hh}
    s_mul_i32 s{t1}, s{t}, {pl4}
    v_and_b32 v{pa}, 1, v0
    v_bfe_u32 v{g1}, v0, 4, 1
    v_lshl_add_u32 v{pa}, v{pa}, 1, v{g1}
    v_mul_u32_u24 v{pa}, {pl}, v{pa}
    v_bfe_u32 v{e}, v0, 2, 2
    v_lshrrev_b32 v{half}, 5, v0
    v_lshl_add_u32 v{e}, v{half}, 2, v{e}
    v_lshl_add_u32 v{pa}, v{e}, 4, v{pa}
    v_bfe_u32 v{e}, v0, 1, 1
    v_lshlrev_b32 v{e}, 3, v{e}
    v_add3_u32 v{pa}, v{pa}, v{e}, s{t1}
    s_lshl_b32 s{t1}, s{ch}, 13
    s_add_u32 s{t1}, s{t1}, {vf}
    v_add_u32 v{vb}, s{t1}, v{l16}
    v_cmp_eq_u32 s[{mk}:{mk1}], s{hh}, v{g1}
    v_mov_b32 v{ones}, 0x3f803f80
    v_and_b32 v{e}, 15, v0
    v_lshl_add_u32 v{e}, v{half}, 4, v{e}
    v_lshlrev_b32 v{e}, 4, v{e}
    s_lshl_b32 s{t1}, s{t}, 9
    v_add_u32 v{e}, s{t1}, v{e}
    s_lshl_b32 s{t1}, s{t}, 5
    s_add_u32 s{t1}, s{t1}, 2048
    v_lshl_add_u32 v{sa}, v{half}, 4, s{t1}
    v_cndmask_b32 v{sa}, v{sa}, v{e}, s[{mk}:{mk1}]
    s_lshr_b32 s{t1}, s{tg}, 1
    s_lshl_b32 s{t1}, s{t1}, 30
    v_add_u32 v{sa}, s{t1}, v{sa}
    """.format(hh=sT + 3, tg=sTG, ch=sCH, t=sT + 1, t1=sT + 2, pl4=4 * PLANE, pl=PLANE, pa=pa, g1=fa, e=fa + 1, half=fa + 2,
               vf=LDS_VF, vb=vb, l16=vL16, mk=sMASK, mk1=sMASK + 1, ones=ones, sa=sa)), 80)
    steps = [(tt, t) for tt in range(4) for t in range(2)]

    def kv_reads(n):
        tt, t = steps[n]
        a_, b_ = fa + 4 * (n & 1), fb + 4 * (n & 1)
        o = (32 * tt + 16 * t) * 16
        return O("ds_read_b64_tr_b16 %s, v%d offset:%d" % (vr(a_, 2), pa, o)) + \
            O("ds_read_b64_tr_b16 %s, v%d offset:%d" % (vr(a_ + 2, 2), pa, o + 128)) + \
            O("ds_read_b128 %s, v%d offset:%d" % (vr(b_, 4), vb, tt * 2048 + t * 1024))
    fill.add([after_barrier("kvin")] + kv_reads(0), KV0)
    for n in range(8):
        if n + 1 < 8:
            fill.add(kv_reads(n + 1), KV0 + n)
        a_, b_ = fa + 4 * (n & 1), fb + 4 * (n & 1)
        for k in range(4):
            fill.add(O("v_cndmask_b32 v%d, v%d, v%d, s[%d:%d]" % (b_ + k, ones, b_ + k, sMASK, sMASK + 1)), KV0 + n + 1)
        fill.add(O("v_mfma_f32_32x32x16_bf16 %s, %s, %s, %s" % (vr(A3, 16), vr(a_, 4), vr(b_, 4), vr(A3, 16) if n else "0")), KV0 + n + 2)
    for q in range(4):
        fill.add(O("buffer_store_dwordx4 %s, v%d, s[%d:%d], s%d offen offset:%d sc1" %
                   (vr(A3 + 4 * q, 4), sa, sWS, sWS + 3, sKV + (q >> 1), (q & 1) * 2176), "kvst"), KV0 + 13)
    fill.add([WaitVM("kvst"), mark("kvout")], 122)
    fill.add([after_barrier("kvout")], 126)
    fill.add(O("""
    v_cmp_eq_u32 vcc, 0, v0
    s_lshl_b32 s{t}, s{jj}, 2
    s_min_u32 s{t1}, s{w}, 1
    s_lshl_b32 s{t1}, s{t1}, 20
    s_add_u32 s{t}, s{t}, s{t1}
    v_mov_b32 v{a}, s{t}
    v_mov_b32 v{b}, 0x100000
    v_cndmask_b32 v{a}, v{b}, v{a}, vcc
    v_mov_b32 v{b}, 1
    buffer_atomic_add v{b}, v{a}, s[{d}:{d3}], 0 offen sc1
    """.format(t=sT + 1, t1=sT + 2, jj=sJJ, w=sW, a=vT, b=vT + 1, d=sDBG, d3=sDBG + 3)) + [deadline(130, "kv stage")], 126)
    fill.add(epi_silu(A0, vT + 4, sH0, 0, hflags), 130)
    fill.add(epi_silu(A2, vT + 12, sH0, 1024, hflags), 130)
    main_loop(S, rounds, fill, {1: phi_setup()})
    fill.drain(S)
    S.ops(epi_silu(A1, vT + 4, sH1, 0, hflags))


def k1_tq(S, hflags):
    S("""
    s_lshl_b32 s{t}, s{jj}, 8
    s_add_u32 s{f0}, s{f0}, s{t}
    s_add_u32 s{f1}, s{f0}, 128
    s_lshl_b32 s{t}, s{jj}, 1
    s_add_u32 s{t}, s{t}, s{ch}
    s_lshl_b32 s{t1}, s{t}, 11
    s_add_u32 s{h2}, s{h0}, s{t1}
    s_add_u32 s{h2}, s{h2}, {k112}
    s_lshl_b32 s{t}, s{jj}, 2
    s_add_u32 s{t}, s{t}, s{ch}
    s_lshl_b32 s{t1}, s{t}, 11
    s_add_u32 s{h0}, s{h0}, s{t1}
    s_add_u32 s{h1}, s{h0}, 4096
    s_mul_i32 s{kv}, s{jj}, {p16}
    s_add_u32 s{kv}, s{kv}, {kvp}
    s_lshl_b32 s{t}, s{m0}, 1
    v_add_u32 v{pw}, s{t}, v{l16}
    """.format(t=sT + 1, t1=sT + 2, jj=sJJ, ch=sCH, f0=sF0, f1=sF1, h0=sH0, h1=sH1, h2=sH2, kv=sKV, k112=112 * 1024,
               p16=16 * 8704, kvp=KVP_OFF, m0=sM0, pw=vPW, l16=vL16))
    A0, A1, A2, A3 = ACC
    rounds = [Round("kqv", sA0, [A0]), Round("dbl", sF0, [A2, A3]), Round("dbl", sF1, [A0, A1])]
    fill = Filler()
    vPHI, vKB, tmp = vT + 4, vT + 12, vT + 20
    imm = lambda hh, part: hh * 2048 + part * 1024
    fill.add(phi_frags(vPHI, vT), 20)
    fill.add(pack8(vKB, A0), 34)
    for hh, p in ((0, A1), (1, A0)):
        fill.add(O("v_mfma_f32_32x32x16_bf16 %s, %s, %s, 0" % (vr(p, 16), vr(vPHI + 4 * hh, 4), vr(vKB + 4 * hh, 4))), 37)
    fill.add(epi_softmax(A1, tmp, imm(0, 0), imm(0, 1)), 39)
    fill.add(epi_softmax(A0, tmp, imm(1, 0), imm(1, 1)) + [deadline(96, "q softmax")], 39)
    fill.add(epi_silu(A2, vT + 4, sH0, 0, hflags), 98)
    fill.add(epi_silu(A3, vT + 12, sH0, 1024, hflags), 98)
    main_loop(S, rounds, fill, {1: phi_setup()})
    fill.drain(S)
    S.ops(epi_silu(A0, vT + 4, sH1, 0, hflags))
    S.ops(epi_silu(A1, vT + 12, sH1, 1024, hflags))
    S("""
    s_lshl_b32 s{t}, s{jj}, 2
    v_mov_b32 v{a}, s{t}
    """.format(t=sT, jj=sJJ, a=vT))
    S("s_mov_b32 s%d, 0" % (sT + 1))
    S.fence()
    S.pad(2)
    S.label("L_poll_kv")
    S("buffer_load_dword v%d, v%d, s[%d:%d], 0 offen sc1" % (vT + 1, vT, sDBG, sDBG + 3))
    S("s_add_u32 s%d, s%d, 1" % (sT + 1, sT + 1))
    S("v_readfirstlane_b32 s%d, v%d" % (sT, vT + 1))
    S("s_lshr_b32 s%d, s%d, 14" % (sT + 2, sT + 1))
    S("s_add_u32 s%d, s%d, s%d" % (sT, sT, sT + 2))
    S("s_cmp_ge_u32 s%d, 16" % sT)
    S.A("s_cbranch_scc0 L_poll_kv")
    ka, za = vT, vT + 1
    S("""
    s_lshr_b32 s{t}, s{w}, 1
    s_mul_i32 s{t}, s{t}, 2176
    s_and_b32 s{t1}, s{w}, 1
    s_lshl_b32 s{t1}, s{t1}, 10
    s_add_u32 s{t}, s{t}, s{t1}
    v_add_u32 v{ka}, s{t}, v{l16}
    v_bfe_u32 v{e}, v0, 3, 2
    v_mul_u32_u24 v{za}, 2176, v{e}
    v_and_b32 v{e}, 7, v0
    v_lshl_add_u32 v{za}, v{e}, 4, v{za}
    v_lshrrev_b32 v{e}, 5, v0
    v_mul_u32_u24 v{e}, {p8}, v{e}
    s_min_u32 s{t}, s{w}, 1
    s_lshl_b32 s{t}, s{t}, 30
    s_add_u32 s{t}, s{t}, 2048
    v_add3_u32 v{za}, v{za}, v{e}, s{t}
    """.format(t=sT, t1=sT + 1, w=sW, ka=ka, za=za, e=vT + 2, l16=vL16, p8=8 * 8704))
    KB, ZB = 128, 192
    for i in range(16):
        S("s_add_u32 s%d, s%d, %d" % (sT, sKV, i * 8704))
        S("buffer_load_dwordx4 %s, v%d, s[%d:%d], s%d offen sc1" % (vr(KB + 4 * i, 4), ka, sWS, sWS + 3, sT))
        if i < 8:
            S("buffer_load_dwordx4 %s, v%d, s[%d:%d], s%d offen sc1" % (vr(ZB + 4 * i, 4), za, sWS, sWS + 3, sT))
    kw, zw, ar = vT + 2, vT + 3, vT + 4
    S("""
    s_and_b32 s{t}, s{w}, 1
    s_lshl_b32 s{t}, s{t}, 12
    s_lshr_b32 s{t1}, s{w}, 2
    s_lshl_b32 s{t1}, s{t1}, 10
    s_add_u32 s{t}, s{t}, s{t1}
    s_bfe_u32 s{t1}, s{w}, 0x10001
    s_lshl_b32 s{t1}, s{t1}, 3
    s_add_u32 s{t}, s{t}, s{t1}
    s_add_u32 s{t}, s{t}, {af}
    v_lshrrev_b32 v{kw}, 5, v0
    v_lshlrev_b32 v{kw}, 11, v{kw}
    v_bfe_u32 v{e}, v0, 4, 1
    v_lshl_add_u32 v{kw}, v{e}, 9, v{kw}
    v_and_b32 v{e}, 15, v0
    v_lshlrev_b32 v{e}, 4, v{e}
    v_add3_u32 v{kw}, v{kw}, v{e}, s{t}
    v_bfe_u32 v{zw}, v0, 1, 2
    v_lshlrev_b32 v{zw}, 11, v{zw}
    v_bfe_u32 v{e}, v0, 4, 1
    v_lshl_add_u32 v{zw}, v{e}, 10, v{zw}
    v_and_b32 v{e}, 1, v0
    v_lshl_add_u32 v{zw}, v{e}, 9, v{zw}
    v_bfe_u32 v{e}, v0, 3, 1
    v_lshl_add_u32 v{zw}, v{e}, 3, v{zw}
    v_add_u32 v{zw}, {afz}, v{zw}
    v_and_b32 v{e}, 31, v0
    v_min_u32 v{e}, 16, v{e}
    v_lshrrev_b32 v{ar}, 5, v0
    v_lshl_add_u32 v{ar}, v{ar}, 5, v{e}
    v_lshlrev_b32 v{ar}, 4, v{ar}
    s_lshl_b32 s{t}, s{ch}, 12
    s_add_u32 s{t}, s{t}, {af}
    v_add_u32 v{ar}, s{t}, v{ar}
    """.format(t=sT, t1=sT + 1, w=sW, ch=sCH, af=LDS_AF, afz=LDS_AF + 256, kw=kw, zw=zw, ar=ar, e=vT + 5))
    for i in range(1, 16):
        for k in range(4):
            S("v_add_f32 v%d, v%d, v%d" % (KB + k, KB + k, KB + 4 * i + k))
        if i < 8:
            for k in range(4):
                S("v_add_f32 v%d, v%d, v%d" % (ZB + k, ZB + k, ZB + 4 * i + k))
    for k in range(4):
        S("v_mov_b32 v%d, v%d" % (ZB + 4 + k, ZB + k))
    for k in range(4):
        S("v_permlane32_swap_b32 v%d, v%d" % (ZB + k, ZB + 4 + k))
    for k in range(4):
        S("v_add_f32 v%d, v%d, v%d" % (ZB + k, ZB + k, ZB + 4 + k))
    for base in (KB, ZB):
        S("v_cvt_pk_bf16_f32 v%d, v%d, v%d" % (base, base, base + 1))
        S("v_cvt_pk_bf16_f32 v%d, v%d, v%d" % (base + 1, base + 2, base + 3))
    S("ds_write_b64 v%d, %s" % (kw, vr(KB, 2)))
    S("s_cmp_lg_u32 s%d, 0" % sW)
    S.fence(vm=False)
    S.pad(2)
    S.A("s_cbranch_scc1 L_skip_z")
    S("ds_write_b64 v%d, %s" % (zw, vr(ZB, 2)))
    S.fence(vm=False)
    S.label("L_skip_z")
    S("s_barrier")
    AFR, PQ = 128, 144
    for hh in range(2):
        for t in range(2):
            S("ds_read_b128 %s, v%d offset:%d" % (vr(AFR + 8 * hh + 4 * t, 4), ar, hh * 2048 + t * 1024))
            S("ds_read_b128 %s, v%d offset:%d" % (vr(PQ + 8 * hh + 4 * t, 4), vPW, hh * 2048 + t * 1024))
    for hh in range(2):
        for t in range(2):
            acc = vr(ACC[2 + hh], 16)
            S("v_mfma_f32_32x32x16_bf16 %s, %s, %s, %s" % (acc, vr(AFR + 8 * hh + 4 * t, 4), vr(PQ + 8 * hh + 4 * t, 4), acc if t else "0"))
    for hh in range(2):
        a = ACC[2 + hh]
        S("v_add_f32 v%d, 0x358637bd, v%d" % (a + 8, a + 8))
        S("v_rcp_f32 v%d, v%d" % (a + 8, a + 8))
        for r in range(8):
            S("v_mul_f32 v%d, v%d, v%d" % (a + r, a + r, a + 8))
        for r in range(4):
            S("v_cvt_pk_bf16_f32 v%d, v%d, v%d" % (a + r, a + 2 * r, a + 2 * r + 1))
        S("buffer_store_dwordx4 %s, v%d, s[%d:%d], s%d offen offset:%d %s" % (vr(a, 4), vL16, sWS, sWS + 3, sH2, hh * 1024, hflags))


def gen_k1(A, hflags):
    kernel_begin(A, "p1_kernel")
    S = Stream(A)
    k1_prologue(S)
    S("s_cmp_eq_u32 s%d, 1" % sTY)
    A("s_cbranch_scc1 L_tq")
    T = S.clone()
    k1_tk(S, hflags)
    A("s_endpgm")
    A.label("L_tq")
    k1_tq(T, hflags)
    A.label("L_k1_end")
    A("s_endpgm")
    print("K1: TK %d instrs (%d nops), TQ %d instrs (%d nops)" % (S.count, S.nops, T.count, T.nops))


def gen_k2(A):
    kernel_begin(A, "p2_kernel")
    S = Stream(A)
    load_args(S, "L_k2_end")
    sKQ, sTH, sRB, sCB, sMB, sHB, sW0, sK = 65, 66, 67, 68, 70, 71, 72, 73
    vD2, vR2, vXO, vRW, vRR = 2, 4, 10, 11, 12
    R2 = 5
    HB = 112
    XR = 100
    S("""
    s_and_b32 s{t}, s2, 7
    s_lshr_b32 s{t1}, s2, 3
    s_lshl_b32 s{rb}, s{t}, 2
    s_lshr_b32 s{t}, s{t1}, 3
    s_add_u32 s{rb}, s{rb}, s{t}
    s_and_b32 s{cb}, s{t1}, 7
    s_and_b32 s{kq}, s{w}, 3
    s_lshr_b32 s{th}, s{w}, 2
    s_lshl_b32 s{mb}, s{kq}, 13
    s_lshl_b32 s{t}, s{th}, 12
    s_add_u32 s{mb}, s{mb}, s{t}
    s_lshl_b32 s{t}, s{rb}, 1
    s_add_u32 s{t}, s{t}, s{th}
    s_mul_i32 s{hb}, s{t}, {hf}
    s_lshl_b32 s{w0}, s{th}, 15
    s_lshl_b32 s{t}, s{cb}, 7
    s_add_u32 s{w0}, s{w0}, s{t}
    s_mov_b32 s{hi}, 0xffff0000
    v_lshrrev_b32 v{a}, 3, v0
    v_and_b32 v{b}, 7, v0
    v_bfe_u32 v{c}, v0, 4, 1
    v_lshlrev_b32 v{c}, 2, v{c}
    v_xor_b32 v{c}, v{c}, v{b}
    v_lshlrev_b32 v{d2}, 10, v{a}
    v_lshl_add_u32 v{d2}, v{c}, 4, v{d2}
    v_lshlrev_b32 v{l16}, 4, v0
    """.format(t=sT, t1=sT + 1, rb=sRB, cb=sCB, kq=sKQ, th=sTH, w=sW, mb=sMB, hb=sHB, hf=144 * 1024, w0=sW0, hi=sHI,
               a=vT, b=vT + 1, c=vT + 2, d2=vD2, l16=vL16))
    srd(S, sWD, 18, 1792 * 1024)
    srd(S, sWO, 10, 512 * 1024)
    srd(S, sWS, 24, WS_BYTES)
    srd(S, sX, 4, 2048 * 1024)
    srd(S, sOUT, 20, 2048 * 1024)
    stages = [(4, 0, 1), (4, 2, 1), (2, 16, 1), (2, 17, 1), (2, 0, 0), (2, 1, 0), (4, 1, 1), (4, 3, 1), (1, 24, 1)]

    def stage_loads(st):
        mul, add, down = stages[st]
        slot = st % R2
        sr = sWD if down else sWO
        out = [O("""
        s_mul_i32 s{k}, s{kq}, {mul}
        s_add_u32 s{k}, s{k}, {add}
        s_lshl_b32 s{t1}, s{k}, 16
        s_add_u32 s{t1}, s{t1}, s{w0}
        s_lshl_b32 s{k}, s{k}, 12
        s_add_u32 s{k}, s{k}, s{hb}
        s_add_u32 s{k}, s{k}, {o}
        """.format(k=sK, kq=sKQ, mul=mul, add=add, t1=sT + 1, w0=sW0, hb=sHB, o=0 if down else 112 * 1024))]
        for n in range(4):
            out.append(O("""
            s_add_u32 m0, s%d, %d
            s_add_u32 s%d, s%d, %d
            """ % (sMB, slot * 32768 + n * 1024, sT, sT + 1, n * 8192)) +
                       O("buffer_load_dwordx4 v%d, s[%d:%d], s%d offen lds" % (vD2, sr, sr + 3, sT), "w%d" % st))
        for k in range(4):
            out.append(O("buffer_load_dwordx4 %s, v%d, s[%d:%d], s%d offen offset:%d" %
                         (vr(HB + 16 * st + 4 * k, 4), vL16, sWS, sWS + 3, sK, k * 1024)))
        return out

    for st in range(R2):
        for grp in stage_loads(st):
            S.ops(grp)
    t = vT + 3
    lane_fields(S, t)
    r, c8, g1, half, sw = t, t + 1, t + 2, t + 3, t + 4
    S("""
    v_lshl_add_u32 v{row}, v{half}, 2, v{r}
    v_lshlrev_b32 v{e}, 5, v{g1}
    v_xor_b32 v{e}, v{e}, v{sw}
    s_lshl_b32 s{t}, s{kq}, 13
    v_add3_u32 v{e}, v{e}, v{c8}, s{t}
    v_lshl_add_u32 v{r0}, v{row}, 7, v{e}
    v_xor_b32 v{r3}, 64, v{r0}
    v_add_u32 v{r1}, 0x10000, v{r0}
    v_add_u32 v{r2}, 0x20000, v{r0}
    v_add_u32 v{r4}, 0x10000, v{r3}
    v_add_u32 v{r5}, 0x20000, v{r3}
    s_lshl_b32 s{t}, s{rb}, 3
    s_add_u32 s{t}, s{t}, s{w}
    s_lshl_b32 s{t}, s{t}, 13
    s_lshl_b32 s{t1}, s{cb}, 7
    s_add_u32 s{t}, s{t}, s{t1}
    v_lshlrev_b32 v{xo}, 10, v{a}
    v_lshl_add_u32 v{xo}, v{b}, 4, v{xo}
    v_add_u32 v{xo}, s{t}, v{xo}
    v_and_b32 v{e}, 31, v0
    s_lshl_b32 s{t}, s{th}, 5
    v_add_u32 v{e}, s{t}, v{e}
    v_mul_u32_u24 v{rw}, 272, v{e}
    v_lshl_add_u32 v{rw}, v{half}, 4, v{rw}
    s_mul_i32 s{t}, s{kq}, 17408
    v_add_u32 v{rw}, s{t}, v{rw}
    s_lshl_b32 s{t}, s{w}, 3
    v_add_u32 v{e}, s{t}, v{a}
    v_mul_u32_u24 v{rr}, 272, v{e}
    v_lshl_add_u32 v{rr}, v{b}, 5, v{rr}
    """.format(row=vT + 8, e=vT + 9, half=half, r=r, g1=g1, sw=sw, c8=c8, t=sT, t1=sT + 1, kq=sKQ, rb=sRB, cb=sCB, th=sTH, w=sW,
               r0=vR2, r1=vR2 + 1, r2=vR2 + 2, r3=vR2 + 3, r4=vR2 + 4, r5=vR2 + 5, xo=vXO, a=vT, b=vT + 1, rw=vRW, rr=vRR))
    slots = []
    for st in range(9):
        for k in range(4):
            for nt in range(2):
                off = (st % R2) * 32768 + k * 2048
                slots.append(dict(st=st, reg=vR2 + 3 * nt + off // 65536, off=off % 65536, step=1024, acc=64 + 16 * nt,
                                  h=HB + 16 * st + 4 * k, first=(k == 0 and nt == 0), start=(st == 0 and k == 0)))
    S.emit(WaitVM("w0"))
    S("s_barrier")
    for g in range(DIST):
        S.ops(frag_reads(slots[g], g))
    dq = Filler()
    issued = R2
    for g, sl in enumerate(slots):
        b = vWB + (g % NWB) * 4
        acc = vr(sl["acc"], 16)
        S("v_mfma_f32_32x32x16_bf16 %s, %s, %s, %s" % (acc, vr(b, 4), vr(sl["h"], 4), "0" if sl["start"] else acc))
        nx = g + DIST
        if nx < len(slots):
            if slots[nx]["first"]:
                c = slots[nx]["st"]
                dq.drain(S)
                S.emit(WaitVM("w%d" % c))
                S("s_barrier")
                hi = min(9, c - 2 + R2 + 1)
                for st in range(issued, hi):
                    for grp in stage_loads(st):
                        dq.add([grp])
                issued = max(issued, hi)
                if c == 7:
                    dq.add([O("buffer_load_dwordx4 %s, v%d, s[%d:%d], 0 offen" % (vr(XR, 4), vXO, sX, sX + 3))])
            S.ops(frag_reads(slots[nx], nx))
        dq.pour(S, g, 12)
    dq.drain(S)
    S("s_barrier")
    for nt in range(2):
        for qd in range(4):
            S("ds_write_b128 v%d, %s offset:%d" % (vRW, vr(64 + 16 * nt + 4 * qd, 4), nt * 128 + qd * 32))
    for k in range(4):
        S("v_lshlrev_b32 v%d, 16, v%d" % (vT + 2 * k, XR + k))
        S("v_and_b32 v%d, s%d, v%d" % (vT + 2 * k + 1, sHI, XR + k))
    S.emit(WaitLG())
    S("s_barrier")
    for src in range(4):
        for hf in range(2):
            S("ds_read_b128 %s, v%d offset:%d" % (vr(112 + 8 * src + 4 * hf, 4), vRR, src * 17408 + hf * 16))
    for src in range(4):
        for k in range(8):
            S("v_add_f32 v%d, v%d, v%d" % (vT + k, vT + k, 112 + 8 * src + k))
    for k in range(4):
        S("v_cvt_pk_bf16_f32 v%d, v%d, v%d" % (vT + 8 + k, vT + 2 * k, vT + 2 * k + 1))
    S("buffer_store_dwordx4 %s, v%d, s[%d:%d], 0 offen" % (vr(vT + 8, 4), vXO, sOUT, sOUT + 3))
    A.label("L_k2_end")
    A("s_endpgm")
    print("K2: %d instrs (%d nops)" % (S.count, S.nops))


HEADER = open("cdna_kernels/%s.s.ref" % NAME).read().split("; Override launch")[0]


def gen(path, hflags=""):
    A = Asm()
    A.raw(HEADER.rstrip())
    A.raw("; @launch kernel=p1_kernel grid=(256,1,1) block=(512,1,1) lds=163840")
    A.raw("; @launch kernel=p2_kernel grid=(256,1,1) block=(512,1,1) lds=163840")
    A.raw('.amdgcn_target "amdgcn-amd-amdhsa--gfx950"')
    A.raw(".text")
    gen_k1(A, hflags)
    gen_k2(A)
    A.raw('.section .rodata,"a"')
    A.raw(descriptor("p1_kernel", 256))
    A.raw(descriptor("p2_kernel", 256))
    open(path, "w").write(A.text())


if __name__ == "__main__":
    gen(sys.argv[1] if len(sys.argv) > 1 else "cdna_kernels/%s.s" % NAME)
```

```python
import sys
sys.path.insert(0, "gen")
from asmlib import Asm, kernel_begin, descriptor
from sched import Stream, Op, O, Filler, WaitVM, WaitLG, Call, deadline, mark, after_barrier

NAME = "parallel_sum__linear_kernel_hedgehog__swiglu_ffn__prompt"
LOG2E = 0x3FB8AA3B
NLOG2E = 0xBFB8AA3B

HF_OFF = 0
KVP_OFF = 16 << 20
FLG_OFF = 20 << 20
STAMP_OFF = 24 << 20
WS_BYTES = 32 << 20
PART = 4352
OOB = 1 << 30

sX, sWA, sWF, sWS, sPH, sDBG, sWD, sWO, sOUT, sR0 = 28, 32, 36, 40, 44, 48, 52, 56, 60, 4
sW, sTG, sCH, sI, sJJ, sTY, sM0 = 64, 65, 66, 67, 68, 69, 70
sA0, sA1, sF0, sF1, sH0, sH1, sH2, sKV = 71, 72, 73, 74, 75, 76, 77, 78
sCL, sCN, sHI, sMSK = 79, 80, 81, 82
sONE = 19
sFP, sFC, sFK, sFD = 83, 84, 85, 18
sUA, sUB, sUC, sBA, sBB, sBC = 8, 9, 10, 11, 12, 13
sRB, sCB, sKQ, sTH = 26, 27, 16, 17
sT = 86

vD2 = 1
vRA, vRF, vRH = 2, 4, 8
vDA, vDF, vL16, vPW, vSG = 10, 11, 13, 14, 15
vT = 16
vP, vKB, vPHI = 32, 24, 20
FLR = {0: 120, 1: 46, 2: 47, 3: 46, "kv": 177}
vWB, NWB = 48, 4
ACC = [64, 80, 96, 112]
XF = 128
vPQ = 128
vR2 = [0] * 6
vFS = 11
C = dict(st=14, dh=12)

RING = 6
LDS_RING = 65536
PLANE = 2112
LDS_VF = 33792
LDS_ONES = 58368
LDS_U = 16384
NU = 9

STAMPS = False
OPT = dict(dist=3, dma0=1, dmastep=3, pf=3, prio=3, xl=1, p2rate=1, acklag=19, vslots=(0, 3, 5), lead=2, xdone=3, kvlate=False, xfast=8, xstep_q=2, oo_slot=180, pf2=0, pf2step=6, sleep=0, pfh=False, nb=8, kvc=150, pace_q=30, la=4, lw=4, e1=149, n_a1=4, early_b=False, early_q=6, pfc=True, c0at=-1, pfat=0, outfl='', n_oo=0, n_b=5, vlast_q=148, vlast_k=160, e1c=19, rot=0, xbar=0, ln='pk', ln2='pk', tq_order=2, tq_ll=164, tk_ll=164, rate_k=0.5, rate_q=1, oo_lag=4, nb_oo=0, pace=20, tq_stage=0, tq_sum=168, pace_o=8, oo_chk=200, n_e2=4, n_ll=5, n_kv=4, lqstep=2,
           g_lo=(20, 10, 14), g_k=(24, 14, 12), g_tail=(24, 14, 12), g_e1=(24, 14, 12), g_q=(24, 14, 12))

STEPS = [(0, k, 1) for k in range(4)] + [(0, 4 + k, 1) for k in range(4)] + [(1, 64 + k, 1) for k in range(4)] + \
        [(2, 96 + k, 1) for k in range(2)] + [(1, 112 + k, 0) for k in range(4)]
NS = 9

def vr(i, n):
    return "v[%d:%d]" % (i, i + n - 1)


def sr4(i):
    return "s[%d:%d]" % (i, i + 3)


def srd_ops(dst, base, nbytes):
    return O("""
    s_mov_b32 s%d, s%d
    s_and_b32 s%d, s%d, 0xffff
    s_mov_b32 s%d, 0x%x
    s_mov_b32 s%d, 0x00020000
    """ % (dst, base, dst + 1, base + 1, dst + 2, nbytes, dst + 3))


def stamp(S, idx):
    if not STAMPS:
        return
    if STAMPS == "ends" and idx not in (0, 24):
        return
    if OPT.get("fine"):
        if 0 < idx < 100:
            return
        idx = max(idx - 99, 0)
    S("s_memrealtime s[96:97]")
    S("s_memtime s[98:99]")
    S("v_writelane_b32 v%d, s96, %d" % (C["st"], idx))
    S("v_writelane_b32 v%d, s98, %d" % (C["st"], 32 + idx))


def stamp_op(idx):
    return Call(lambda S: stamp(S, idx))


def stamp_flush(S):
    if not STAMPS:
        return
    S("""
    s_lshl_b32 s96, s2, 3
    s_add_u32 s96, s96, s{w}
    s_lshl_b32 s96, s96, 8
    s_add_u32 s96, s96, {off}
    v_lshlrev_b32 v1, 2, v0
    buffer_store_dword v{st}, v1, {ws}, s96 offen
    """.format(w=sW, off=STAMP_OFF, st=C["st"], ws=sr4(sWS)))


class Poll:
    def __init__(self, reg, srd, soff, want, lanes, fa=vFS, only0=False):
        self.reg, self.want, self.lanes, self.only0 = reg, want, lanes, only0
        self.load = "buffer_load_dword v%d, v%d, %s, s%d offen sc1" % (reg, fa, sr4(srd), soff)

    def sample(self):
        if not self.only0:
            return O(self.load)

        def fn(S):
            skip = S.A.uid("L_nos")
            S("s_cmp_lg_u32 s%d, 0" % sW)
            S.A("s_cbranch_scc1 " + skip)
            S.A(self.load)
            S.label(skip)
            self.at = S.vm_issued
        return [Call(fn)]

    def check(self):
        test = "v_cmp_gt_u32 vcc, %d, v%d\ns_nop 0\ns_and_b32 s%d, vcc_lo, %d\n" % (self.want, self.reg, sT + 6, self.lanes)

        def fn(S):
            ok, spin = S.A.uid("L_ok"), S.A.uid("L_spin")
            if self.only0:
                S("s_cmp_lg_u32 s%d, 0" % sW)
                S.A("s_cbranch_scc1 " + ok)
                S.A("s_waitcnt vmcnt(%d)" % min(63, S.vm_issued - self.at))
            else:
                S.need(["v%d" % self.reg])
            S.A(test)
            S.A("s_cbranch_scc0 " + ok)
            S.A("s_mov_b32 s%d, 0" % (sT + 5))
            S.label(spin)
            if OPT["sleep"]:
                S.A("s_sleep %d" % OPT["sleep"])
            S.A(self.load)
            S.A("""
            s_add_u32 s{c}, s{c}, 1
            s_cmp_ge_u32 s{c}, 0x80000
            s_cbranch_scc1 {ok}
            s_waitcnt vmcnt(0)
            """.format(c=sT + 5, ok=ok))
            S.A(test)
            S.A("s_cbranch_scc1 " + spin)
            S.label(ok)
        return [Call(fn)]


def arrive(tags, tmp, soff, level):
    return O("""
    v_lshlrev_b32 v{a}, 24, v0
    v_mov_b32 v{t}, {l}
    """.format(t=tmp, a=tmp + 1, l=max(level, 1))) + [WaitVM(*tags)] + \
        O("%s v%d, v%d, %s, s%d offen sc1" % ("buffer_store_dword" if level else "buffer_atomic_add", tmp, tmp + 1, sr4(sWS), soff))


def sample_addr_ops(t, vq):
    def free(S):
        assert not vq.touches("v%d" % vFS)
    return [Call(free)] + O("""
    v_and_b32 v{a}, 1, v0
    v_bfe_u32 v{t}, v0, 1, 1
    v_lshl_or_b32 v{a}, v{t}, 2, v{a}
    v_lshlrev_b32 v{a}, 2, v{a}
    v_bfe_u32 v{t}, v0, 2, 1
    v_xor_b32 v{t}, 1, v{t}
    v_lshl_or_b32 v{a}, v{t}, 10, v{a}
    v_lshrrev_b32 v{t}, 3, v0
    v_lshl_or_b32 v{a}, v{t}, 24, v{a}
    """.format(t=t, a=vFS))


def init_poll(add, hooks, pre, t):
    p = Poll(t + 1, sDBG, sONE + 1, 1, 1, t, True)
    add(hooks, 72, O("v_lshlrev_b32 v%d, 24, v0" % t) + O("s_mov_b32 s%d, 0" % (sONE + 1)) + p.sample())
    add(pre, 12, p.check())


def epi_silu(acc, tmp, soff, imm, tag):
    g, u = acc, acc + 8
    ops = []
    for r in range(8):
        ops += O("v_mul_f32 v%d, s%d, v%d" % (tmp + r, sCN, g + r))
    for r in range(8):
        ops += O("v_exp_f32 v%d, v%d" % (tmp + r, tmp + r))
        ops += O("v_mul_f32 v%d, v%d, v%d" % (u + r, g + r, u + r))
    for r in range(8):
        ops += O("v_add_f32 v%d, 1.0, v%d" % (tmp + r, tmp + r))
    for r in range(8):
        ops += O("v_rcp_f32 v%d, v%d" % (tmp + r, tmp + r))
        if r >= 2:
            ops += O("v_mul_f32 v%d, v%d, v%d" % (u + r - 2, u + r - 2, tmp + r - 2))
    ops += O("v_cvt_pk_bf16_f32 v%d, v%d, v%d" % (g, u, u + 1))
    ops += O("v_mul_f32 v%d, v%d, v%d" % (u + 6, u + 6, tmp + 6))
    ops += O("v_cvt_pk_bf16_f32 v%d, v%d, v%d" % (g + 1, u + 2, u + 3))
    ops += O("v_mul_f32 v%d, v%d, v%d" % (u + 7, u + 7, tmp + 7))
    for r in range(2, 4):
        ops += O("v_cvt_pk_bf16_f32 v%d, v%d, v%d" % (g + r, u + 2 * r, u + 2 * r + 1))
    ops += O("buffer_store_dwordx4 %s, v%d, %s, s%d offen offset:%d sc1" % (vr(g, 4), vL16, sr4(sWS), soff, imm), tag)
    return ops


def epi_softmax(p, tmp, dst, imms):
    a, b, c, d = tmp, tmp + 1, tmp + 2, tmp + 3
    ops = []
    for base, m in ((p, a), (p + 8, b)):
        ops += O("v_max3_f32 v%d, v%d, v%d, v%d" % (m, base, base + 1, base + 2))
    for k in (3, 5):
        for base, m in ((p, a), (p + 8, b)):
            ops += O("v_max3_f32 v%d, v%d, v%d, v%d" % (m, m, base + k, base + k + 1))
    for base, m in ((p, a), (p + 8, b)):
        ops += O("v_max_f32 v%d, v%d, v%d" % (m, m, base + 7))
    ops += O("""
    v_permlane32_swap_b32 v{a}, v{b}
    v_max_f32 v{a}, v{a}, v{b}
    v_mul_f32 v{a}, s{cn}, v{a}
    v_mov_b32 v{b}, v{a}
    v_permlane32_swap_b32 v{a}, v{b}
    """.format(a=a, b=b, cn=sCN))
    order = [r // 2 + 8 * (r & 1) for r in range(16)]
    for r in order:
        ops += O("v_fma_f32 v%d, v%d, s%d, v%d" % (p + r, p + r, sCL, a if r < 8 else b))
    pend = []
    for n, r in enumerate(order):
        ops += O("v_exp_f32 v%d, v%d" % (p + r, p + r))
        pend.append(r)
        if n >= 4:
            q = order[n - 2]
            s_ = c if q < 8 else d
            if q % 8 == 1:
                ops += O("v_add_f32 v%d, v%d, v%d" % (s_, p + q - 1, p + q))
            else:
                ops += O("v_add_f32 v%d, v%d, v%d" % (s_, s_, p + q))
    ops += O("""
    v_add_f32 v{c}, v{c}, v{l0}
    v_add_f32 v{d}, v{d}, v{l1}
    v_permlane32_swap_b32 v{c}, v{d}
    v_add_f32 v{c}, v{c}, v{d}
    v_rcp_f32 v{c}, v{c}
    v_mov_b32 v{d}, v{c}
    v_permlane32_swap_b32 v{c}, v{d}
    """.format(c=c, d=d, l0=p + 7, l1=p + 15))
    for half, s_ in ((0, c), (1, d)):
        base = p + 8 * half
        for r in range(8):
            ops += O("v_mul_f32 v%d, v%d, v%d" % (base + r, base + r, s_))
        for r in range(4):
            ops += O("v_cvt_pk_bf16_f32 v%d, v%d, v%d" % (dst + (0 if imms else 4 * half) + r, base + 2 * r, base + 2 * r + 1))
        if imms:
            ops += O("ds_write_b128 v%d, %s offset:%d" % (vPW, vr(dst, 4), imms[half]), "pw")
    return ops


def pack8(dst, src):
    return [Op("v_cvt_pk_bf16_f32 v%d, v%d, v%d" % (dst + r, src + 2 * r, src + 2 * r + 1)) for r in range(8)]


def phi_dma(lds_phi):
    return [O("""
    s_lshr_b32 s{t}, s{m0}, 1
    s_add_u32 m0, s{t}, {base}
    s_lshl_b32 s{t}, s{jj}, 1
    s_add_u32 s{t}, s{t}, s{ch}
    s_lshl_b32 s{t}, s{t}, 10
    """.format(t=sT, m0=sM0, base=lds_phi, jj=sJJ, ch=sCH)) +
            O("buffer_load_dwordx4 v%d, %s, s%d offen lds" % (vL16, sr4(sPH), sT), "phi")]


class Round:
    def __init__(self, kind, soff, accs, swap=False):
        self.kind, self.soff, self.accs, self.swap = kind, soff, accs, swap
        self.nchunks = 8 if kind == "dbl" else 4


def dma_group(m0off, va, srd, soff, goff, tag):
    return O("""
    s_add_u32 m0, s%d, %d
    s_add_u32 s%d, s%d, %d
    """ % (sM0, m0off, sT, soff, goff)) + O("buffer_load_dwordx4 v%d, %s, s%d offen lds" % (va, sr4(srd), sT), tag)


def chunk_dma(rnd, c, gc):
    base = LDS_RING + ((gc + 4) % RING) * 16384
    out = []
    for n in range(2):
        if rnd.kind == "kqv":
            goff, va, sr = (128 * c + 8 * n) * 3072, vDA, sWA
        elif rnd.kind == "dbl":
            goff, va, sr = (64 * c + 8 * n) * 3584, vDF, sWF
        else:
            goff, va, sr = (128 * c + 16 * n) * 3584, vDA, sWF
        out.append(dma_group(base + n * 1024, va, sr, rnd.soff, goff, "c%d" % gc))
    return out


def unit_base(u):
    return LDS_U + (u % NU) * 16384


def unit_dma(u):
    base, k0, down = STEPS[u]
    row = 16 * (k0 if down else k0 - 112)
    return [dma_group(unit_base(u) + n * 1024, vD2, sWD if down else sWO, (sUA, sUB, sUC)[base], row * 1024 + n * 8192, "u%d" % u)
            for n in range(2)]


UNITS_AT = {16: [3], 17: [4], 18: [5], 19: [6]}
HRING = list(range(16, 48, 8)) + [128, 136, 248] + list(range(144, 176, 8))


def hreg(n, th):
    return (144 + 8 * n if n < 4 else HRING[(n - 4) % len(HRING)]) + 4 * th


def h_loads(n):
    base, k0, down = STEPS[n]
    return [O("s_add_u32 s%d, s%d, %d" % (sT, (sBA, sBB, sBC)[base], k0 * 1024 + th * 144 * 1024)) +
            O("buffer_load_dwordx4 %s, v%d, %s, s%d offen sc1" % (vr(hreg(n, th), 4), vL16, sr4(sWS), sT)) for th in range(2)]


def wreg(n, nt):
    return (176 + 8 * n if n < NS else vWB + 8 * (n & 1)) + 4 * nt


def w_reads(n):
    off = unit_base(n) - LDS_U
    return [Op("ds_read_b64_tr_b16 %s, v%d offset:%d" % (vr(wreg(n, nt) + 2 * rd, 2), vR2[3 * nt + off // 65536], off % 65536 + rd * 1024), "w%d" % n)
            for nt in range(2) for rd in range(2)]


def mfma2(n, nt, th):
    acc = vr(ACC[2 * nt + th], 16)
    return Op("v_mfma_f32_32x32x16_bf16 %s, %s, %s, %s" % (acc, vr(wreg(n, nt), 4), vr(hreg(n, th), 4), acc if n else "0"))


def build_slots(rounds):
    slots, chunks = [], []
    for rnd in rounds:
        base = len(chunks)
        chunks += [(rnd, c) for c in range(rnd.nchunks)]
        order = [(ks, u) for ks in range(32) for u in range(len(rnd.accs))]
        if rnd.kind == "dbl":
            order[:8] = sorted(order[:8], key=lambda t: (t[1], t[0]))
        for ks, u in order:
            per = 32 // rnd.nchunks
            gc, k = base + ks // per, ks % per
            off = ((gc + 4) % RING) * 16384
            if rnd.kind == "kqv":
                reg, off, step = vRA, off + k * 2048, 512
            elif rnd.kind == "dbl":
                reg, off, step = vRF + 2 * u, off + k * 2048, 512
            else:
                reg, off, step = vRH, off + k * 1024, 256
            slots.append(dict(c=gc, reg=reg + off // 65536, off=off % 65536, step=step, acc=rnd.accs[u], b=XF + 4 * ks,
                              swap=rnd.swap, first=(k == 0 and u == 0), zero=(ks == 0)))
    return slots, chunks


def frag_reads(sl, g):
    b = vWB + (g % NWB) * 4
    return O("ds_read_b64_tr_b16 %s, v%d offset:%d" % (vr(b, 2), sl["reg"], sl["off"])) + \
        O("ds_read_b64_tr_b16 %s, v%d offset:%d" % (vr(b + 2, 2), sl["reg"], sl["off"] + sl["step"]))


def x_read(s_):
    return O("ds_read_b128 %s, v%d offset:%d" % (vr(XF + 4 * s_, 4), vKB + (s_ & 7), ((s_ >> 3) & 1) * 32768))


class VQ:
    def __init__(self):
        self.q = []

    def add(self, groups, dl):
        for g in groups:
            self.q.append((dl, g))
        self.q.sort(key=lambda t: t[0])

    def due(self, c):
        return sum(1 for dl, _ in self.q if dl <= c)

    def touches(self, reg):
        return any(reg in getattr(o, "uses", []) + getattr(o, "defs", []) for _, g in self.q for o in g)

    def pop(self, S):
        S.ops(self.q.pop(0)[1])


def main_loop(S, rounds, fill, budgets, pre_sync, post_sync, hooks, early_units, vq, xstep, vlast):
    xfree = {1: 0, 2: 1, 3: 2, 4: 3} if xstep == 1 else {1: 0, 2: 1, 4: 2, 6: 3}
    slots, chunks = build_slots(rounds)
    n, dist = len(slots), OPT["dist"]
    st = dict(since=0, chunk=2)
    xnext = 4
    for s_ in range(xnext):
        S.ops(x_read(s_))
    for g in range(dist):
        S.ops(frag_reads(slots[g], g))

    def sync(c):
        assert not vq.due(c), "memory groups overdue at barrier %d" % c
        S.ops(pre_sync.pop(c, []))
        if c in xfree:
            q = xfree[c]
            assert xnext >= 8 * (q + 1)
            S.need(["v%d" % r for r in range(XF + 32 * q, XF + 32 * (q + 1))])
        S.emit(WaitVM("c%d" % c))
        S("s_barrier")
        for dl, groups in post_sync.pop(c, []):
            vq.add(groups, dl)
        hi = min(20, {1: 4}.get(c, c + 5))
        for gc in range(st["chunk"], hi):
            vq.add(chunk_dma(chunks[gc][0], chunks[gc][1], gc), max(gc - OPT["lead"], c + 1))
        st["chunk"] = max(st["chunk"], hi)
        units = list(UNITS_AT.get(c, []))
        if c == early_units[0]:
            units = [0, 1, 2] + units
        assert c < 16 or c >= early_units[0]
        for u in units:
            vq.add(unit_dma(u), 30 + u)
        st["since"] = 0

    def needs_sync(nx):
        return nx < n and slots[nx]["first"]

    for g, sl in enumerate(slots):
        S.slot = g
        S.ops(hooks.pop(g, []))
        b = vWB + (g % NWB) * 4
        a_, b_ = (vr(sl["b"], 4), vr(b, 4)) if sl["swap"] else (vr(b, 4), vr(sl["b"], 4))
        acc = vr(sl["acc"], 16)
        S("v_mfma_f32_32x32x16_bf16 %s, %s, %s, %s" % (acc, a_, b_, "0" if sl["zero"] else acc))
        nx = g + dist
        for _ in range(2 if xnext < OPT["xfast"] else 1 if xnext < 16 or g % xstep == 0 else 0):
            if xnext < 32:
                if xnext == 16:
                    for k in range(8):
                        S("v_xor_b32 v%d, 0x10000, v%d" % (vKB + k, vKB + k))
                S.ops(x_read(xnext))
                xnext += 1
        if nx < n:
            S.ops(frag_reads(slots[nx], nx))
        budget, b_dma, b_bar = budgets(g)
        pre = needs_sync(nx + 1)
        if pre:
            budget = min(budget, b_bar)
        left = 0
        while g + left < n and not needs_sync(nx + 1 + left):
            left += 1
        nxt = slots[nx + 1 + left]["c"] if nx + 1 + left < n else 20
        want = int(st["since"] % 8 in (OPT["vslots"] if g < vlast else range(8)))
        done = 0
        while vq.q and (done < want or vq.due(nxt) > left):
            vq.pop(S)
            done += 1
        if done:
            budget = min(budget, b_dma)
        st["since"] += 1
        if budget > 0:
            fill.pour(S, g, budget)
        if pre:
            nb = vWB + ((g + 1) % NWB) * 4
            S.need(["v%d" % r for r in range(nb, nb + 4)])
            sync(slots[nx + 1]["c"])
    assert not pre_sync and not post_sync and not hooks, (pre_sync.keys(), post_sync.keys(), hooks.keys())
    S.slot = n
    stamp(S, 13)
    S("s_barrier")
    vq.add(unit_dma(7), 37)
    vq.add(unit_dma(8), 38)
    fill.drain(S)


def prologue(S):
    S("s_cmp_ge_u32 s2, 256")
    S.A("s_cbranch_scc1 L_end")
    SRDS = ((sX, 0, 2048 * 1024), (sWA, 8, 512 * 3072), (sPH, 16, 32 * 512), (sWO, 24, 512 * 1024), (sWD, 56, 1792 * 1024),
            (sOUT, 64, 2048 * 1024), (sDBG, 72, 256), (sWS, 80, WS_BYTES))
    for d, off, n in SRDS[:2]:
        S("s_load_dwordx2 s[%d:%d], s[0:1], %d" % (d, d + 1, off))
    S("s_load_dwordx4 s[12:15], s[0:1], 40")
    for d, off, n in SRDS[2:]:
        S("s_load_dwordx2 s[%d:%d], s[0:1], %d" % (d, d + 1, off))
    S("""
    v_lshrrev_b32 v1, 6, v0
    v_and_b32 v0, 63, v0
    v_readfirstlane_b32 s{w}, v1
    """.format(w=sW))
    if OPT["pfc"]:
        S.A("""
        s_cmp_lg_u32 s{w}, 7
        s_cbranch_scc1 L_nopfc
        s_getpc_b64 s[8:9]
        L_pc:
        s_lshr_b32 s10, s2, 3
        s_and_b32 s10, s10, 7
        s_lshl_b32 s10, s10, 6
        v_add_u32 v2, s10, v0
        v_min_u32 v2, (L_last - L_pc) / 128, v2
        v_lshlrev_b32 v2, 7, v2
        global_load_dword v15, v2, s[8:9]
        L_nopfc:
        """.format(w=sW))
    for d, off, n in SRDS + ((sWF, 0, 512 * 3584),):
        S("s_mov_b32 s%d, 0x%x" % (d + 2, n))
        S("s_mov_b32 s%d, 0x00020000" % (d + 3))
    if STAMPS:
        S("v_mov_b32 v%d, 0" % C["st"])
    if STAMPS == "ends":
        S("s_memrealtime s[100:101]")
    else:
        stamp(S, 0)
    xo0, xo1 = sT + 4, sT + 5
    pT = 32
    la, lb = pT, pT + 1
    S("""
    s_and_b32 s{t}, s2, 7
    s_lshr_b32 s{t1}, s2, 3
    s_lshr_b32 s{i}, s{t}, 2
    s_lshl_b32 s{i}, s{i}, 3
    s_bfe_u32 s{t2}, s{t1}, 0x30001
    s_add_u32 s{i}, s{i}, s{t2}
    s_lshr_b32 s{q}, s{t1}, 4
    s_lshl_b32 s{q}, s{q}, 1
    s_and_b32 s{t2}, s{t1}, 1
    s_add_u32 s{q}, s{q}, s{t2}
    s_mul_i32 s{q}, s{q}, {rot}
    s_lshr_b32 s{t2}, s{w}, 2
    s_add_u32 s{q}, s{q}, s{t2}
    s_and_b32 s{q}, s{q}, 3
    s_lshl_b32 s{q}, s{q}, 2
    s_and_b32 s{t2}, s{w}, 3
    s_add_u32 s{q}, s{q}, s{t2}
    s_lshl_b32 s{xo0}, s{i}, 4
    s_add_u32 s{xo0}, s{xo0}, s{q}
    s_lshl_b32 s{xo0}, s{xo0}, 13
    s_xor_b32 s{xo1}, s{xo0}, 0x10000
    v_lshrrev_b32 v{a}, 3, v0
    v_and_b32 v{b}, 7, v0
    v_lshlrev_b32 v1, 10, v{a}
    v_lshl_or_b32 v1, v{b}, 4, v1
    """.format(t=sT + 1, t1=sT + 2, t2=sT + 3, i=sI, w=sW, xo0=xo0, xo1=xo1, a=la, b=lb, q=sKV, rot=OPT["rot"]))
    S("""
    s_lshr_b32 s{ty}, s{t1}, 4
    s_and_b32 s{jj}, s{t}, 3
    s_lshl_b32 s{jj}, s{jj}, 1
    s_and_b32 s{t2}, s{t1}, 1
    s_add_u32 s{jj}, s{jj}, s{t2}
    s_lshl_b32 s{rb2}, s{t}, 2
    s_lshr_b32 s{t2}, s{t1}, 3
    s_add_u32 s{rb2}, s{rb2}, s{t2}
    s_and_b32 s{cb2}, s{t1}, 7
    s_and_b32 s{tg}, s{w}, 3
    s_lshr_b32 s{ch}, s{w}, 2
    s_lshl_b32 s{m0}, s{w}, 11
    s_mov_b32 s{cl}, {L}
    s_mov_b32 s{cn}, {N}
    s_mov_b32 s{hi}, 0xffff0000
    """.format(t=sT + 1, t1=sT + 2, t2=sT + 3, ty=sTY, jj=sJJ, tg=sTG, ch=sCH, w=sW, m0=sM0, cl=sCL, cn=sCN, hi=sHI,
               rb2=26, cb2=27, L=hex(LOG2E), N=hex(NLOG2E)))
    xw = pT + 4
    S("""
    s_lshl_b32 s{t}, s{q}, 11
    s_and_b32 s{u}, s{w}, 1
    s_lshl_b32 s{u}, s{u}, 7
    s_add_u32 s{t}, s{t}, s{u}
    v_xor_b32 v{xw}, v{a}, v{b}
    v_lshlrev_b32 v{xw}, 4, v{xw}
    v_lshl_add_u32 v{xw}, v{a}, 8, v{xw}
    v_add_u32 v{xw}, s{t}, v{xw}
    v_xor_b32 v{xw1}, 0x80, v{xw}
    v_add_u32 v{xw2}, 0x10000, v{xw}
    v_add_u32 v{xw3}, 0x10000, v{xw1}
    """.format(t=sT + 1, u=sT + 2, q=sKV, w=sW, xw=xw, xw1=xw + 1, xw2=xw + 2, xw3=xw + 3, a=la, b=lb))
    d0, c_ = pT + 2, pT + 3
    S("""
    v_bfe_u32 v{c}, v0, 4, 1
    v_lshlrev_b32 v{c}, 2, v{c}
    v_xor_b32 v{c}, v{c}, v{b}
    v_mul_u32_u24 v{da}, 3072, v{a}
    v_lshl_add_u32 v{da}, v{c}, 4, v{da}
    s_lshl_b32 s{t}, s{ch}, 1
    v_xor_b32 v{c}, s{t}, v{c}
    v_mul_u32_u24 v{df}, 3584, v{a}
    v_lshl_add_u32 v{df}, v{c}, 4, v{df}
    v_cmp_eq_u32 vcc, s{ty}, 0
    v_lshlrev_b32 v{l16}, 4, v0
    v_cndmask_b32 v{d0}, v{df}, v{da}, vcc
    """.format(a=la, b=lb, c=c_, da=vDA, df=vDF, t=sT + 1, ch=sCH, ty=sTY, d0=d0, l16=vL16).replace(
        "v_cmp_eq_u32 vcc, s%d, 0" % sTY, "v_cmp_eq_u32_e64 vcc, s%d, 0" % sTY))

    def xload(g, p):
        return O("buffer_load_dwordx4 %s, v1, %s, s%d offen offset:%d" % (vr(64 + 32 * g + 4 * p, 4), sr4(sX), xo0 + g, p * 128))
    for p in range(8):
        S.ops(xload(0, p))
        if p + 1 == OPT["xbar"]:
            S("s_barrier")
    stamp(S, 1)
    S("""
    s_cmp_eq_u32 s{ch}, 0
    s_cselect_b32 s{f}, s12, s14
    s_cselect_b32 s{f1}, s13, s15
    """.format(ch=sCH, f=sWF, f1=sWF + 1))
    st_c, st_n, o0 = sT + 6, sT + 7, sT + 8
    S("""
    s_mul_i32 s{a0}, s{w}, {w16}
    s_lshl_b32 s{t}, s{jj}, 7
    s_add_u32 s{a0}, s{a0}, s{t}
    s_mul_i32 s{f0}, s{tg}, {r16}
    s_add_u32 s{t2}, s{a0}, 1024
    s_lshl_b32 s{t}, s{jj}, 8
    s_add_u32 s{t}, s{t}, s{f0}
    s_mov_b32 s{c}, {ck}
    s_mov_b32 s{n}, {nk}
    s_cmp_eq_u32 s{ty}, 0
    s_cselect_b32 s{o0}, s{t2}, s{t}
    s_cselect_b32 s{c}, s{c}, {cq}
    s_cselect_b32 s{n}, s{n}, {nq}
    s_cselect_b32 s{r}, s{wa}, s{wf}
    s_cselect_b32 s{r1}, s{wa1}, s{wf1}
    s_cselect_b32 s{r2}, s{wa2}, s{wf2}
    s_mov_b32 s{r3}, 0x00020000
    """.format(a0=sA0, w=sW, w16=16 * 3072, t=sT + 1, t2=sT + 2, jj=sJJ, f0=sF0, tg=sTG, r16=16 * 3584, c=st_c, n=st_n,
               ck=128 * 3072, nk=8 * 3072, cq=64 * 3584, nq=8 * 3584, ty=sTY, o0=o0, r=sR0, r1=sR0 + 1, r2=sR0 + 2, r3=sR0 + 3,
               wa=sWA, wa1=sWA + 1, wa2=sWA + 2, wf=sWF, wf1=sWF + 1, wf2=sWF + 2, rb=sRB, cb=sCB))
    later = [xload(1, p) for p in range(8)]
    for c in range(2):
        for n in range(2):
            ops = O("s_add_u32 m0, s%d, %d" % (sM0, LDS_RING + (4 + c) * 16384 + n * 1024))
            if c or n:
                ops += O("s_add_u32 s%d, s%d, s%d" % (o0, o0, st_n if n else st_c))
                if c and not n:
                    ops += O("s_sub_u32 s%d, s%d, s%d" % (o0, o0, st_n))
            else:
                ops += O("s_nop 0")
            ops += O("buffer_load_dwordx4 v%d, %s, s%d offen lds" % (d0, sr4(sR0), o0), "c%d" % c)
            later.append(ops)
    frag_addr_setup(S)
    pf = []
    if OPT["pf"] == 3:
        pf = prefetch_all(pT + 10)
    elif OPT["pf"]:
        pf = prefetch_ops(pT + 10)
        S.ops(pf[:1])
        pf = pf[1:]
    s0, q0 = pT + 12, pT + 14
    ln = OPT["ln"]
    S("s_mov_b32 s%d, 0x3f803f80" % (sT + 9))
    if OPT["xl"] < 0:
        for _ in range(8 if OPT["xl"] == -1 else 12):
            S.ops(later.pop(0))
    if OPT["pfat"] < 0:
        S.ops(pf)
    if OPT["prio"]:
        S("s_setprio 1")
    for g in range(2):
        raw, un = 64 + 32 * g, 128 + 64 * g
        for d in range(32):
            lo = un + 2 * d
            if ln != "dot":
                S("v_lshlrev_b32 v%d, 16, v%d" % (lo, raw + d))
                S("v_and_b32 v%d, s%d, v%d" % (lo + 1, sHI, raw + d))
            elif d == 0:
                for r in (s0, s0 + 1, q0, q0 + 1):
                    S("v_mov_b32 v%d, 0" % r)
                S.need(["v%d" % raw])
            if d == 0:
                if g == 0:
                    stamp(S, 2)
            if ln == "dot":
                S("v_dot2c_f32_bf16 v%d, s%d, v%d" % (s0 + (d & 1), sT + 9, raw + d))
                S("v_dot2c_f32_bf16 v%d, v%d, v%d" % (q0 + (d & 1), raw + d, raw + d))
            elif ln == "plain":
                for h in range(2):
                    if d == 0:
                        S("v_mul_f32 v%d, v%d, v%d" % (q0 + h, lo + h, lo + h))
                    else:
                        S("v_add_f32 v%d, v%d, v%d" % (s0 + h, s0 + h if d > 1 else un + h, lo + h))
                        S("v_fmac_f32 v%d, v%d, v%d" % (q0 + h, lo + h, lo + h))
            elif d == 0:
                S("v_pk_mul_f32 %s, %s, %s" % (vr(q0, 2), vr(lo, 2), vr(lo, 2)))
            else:
                S("v_pk_add_f32 %s, %s, %s" % (vr(s0, 2), vr(s0, 2) if d > 1 else vr(un, 2), vr(lo, 2)))
                S("v_pk_fma_f32 %s, %s, %s, %s" % (vr(q0, 2), vr(lo, 2), vr(lo, 2), vr(q0, 2)))
            if (g == 0 and d % 4 == OPT["xl"]) or (g == 1 and later and d >= OPT["c0at"] and d % 4 == 3):
                S.ops(later.pop(0))
        if g == 0 and OPT["prio"] == 1:
            S("s_setprio 0")
        if g == 0 and OPT["prio"] >= 2:
            S("s_cmp_lg_u32 s%d, 0" % sCH)
            S.A("s_cbranch_scc1 L_keepprio")
            S.A("s_setprio 0")
            S.label("L_keepprio")
        if g == 1 and OPT["prio"] == 3:
            S("s_setprio 0")
        S("v_add_f32 v%d, v%d, v%d" % (s0, s0, s0 + 1))
        S("v_add_f32 v%d, v%d, v%d" % (q0, q0, q0 + 1))
        for ctl in ("quad_perm:[1,0,3,2]", "quad_perm:[2,3,0,1]", "row_half_mirror"):
            S("v_add_f32_dpp v%d, v%d, v%d %s row_mask:0xf bank_mask:0xf" % (s0, s0, s0, ctl))
            S("v_add_f32_dpp v%d, v%d, v%d %s row_mask:0xf bank_mask:0xf" % (q0, q0, q0, ctl))
        S("""
        v_mul_f32 v{s0}, 0x3b000000, v{s0}
        v_mul_f32 v{q0}, 0x3b000000, v{q0}
        v_fma_f32 v{q0}, -v{s0}, v{s0}, v{q0}
        v_max_f32 v{q0}, 0, v{q0}
        v_add_f32 v{q0}, 0x3727c5ac, v{q0}
        v_rsq_f32 v{q0}, v{q0}
        v_mul_f32_e64 v{s0}, -v{s0}, v{q0}
        """.format(s0=s0, q0=q0))
        stamp(S, 3 + g)
        if g == 0 and OPT["c0at"] < 0:
            while later:
                S.ops(later.pop(0))
        if g == OPT["pfat"]:
            S.ops(pf)
        for p in range(8):
            for d in range(4 * p, 4 * p + 4):
                lo = un + 2 * d
                if ln == "dot":
                    S("v_lshlrev_b32 v%d, 16, v%d" % (lo, raw + d))
                    S("v_and_b32 v%d, s%d, v%d" % (lo + 1, sHI, raw + d))
            for d in range(4 * p, 4 * p + 4):
                lo = un + 2 * d
                if OPT["ln2"] == "pk":
                    S("v_pk_fma_f32 %s, %s, %s, %s op_sel_hi:[1,0,0]" % (vr(lo, 2), vr(lo, 2), vr(q0, 2), vr(s0, 2)))
                else:
                    S("v_fma_f32 v%d, v%d, v%d, v%d" % (lo, lo, q0, s0))
                    S("v_fma_f32 v%d, v%d, v%d, v%d" % (lo + 1, lo + 1, q0, s0))
            for d in range(4 * p, 4 * p + 4):
                lo = un + 2 * d
                S("v_cvt_pk_bf16_f32 v%d, v%d, v%d" % (raw + d, lo, lo + 1))
            kq = p >> 1
            S("ds_write_b128 v%d, %s offset:%d" % (xw + 2 * (kq < 2) + (p & 1), vr(raw + 4 * p, 4), (kq & 1) * 32768))
        if g == 0:
            for n in range(4):
                S("v_xor_b32 v%d, 0x4000, v%d" % (xw + n, xw + n))
    assert not later
    if OPT["prio"] == 2:
        S("s_setprio 0")
    S.emit(WaitLG())
    stamp(S, 5)
    S.emit(WaitVM("c0"))
    S("s_barrier")


def frag_addr_setup(S):
    t = vT + 1
    r, c8, g1, half, sw, row, e = t, t + 1, t + 2, t + 3, t + 4, t + 5, t + 6
    S("""
    v_and_b32 v{row}, 31, v0
    v_lshrrev_b32 v{half}, 5, v0
    v_and_b32 v{e}, 15, v0
    v_xor_b32 v{e}, v{e}, v{half}
    v_lshlrev_b32 v{e}, 4, v{e}
    s_lshl_b32 s{t}, s{tg}, 13
    s_add_u32 s{t}, s{t}, 0x10000
    v_lshl_add_u32 v{fa}, v{row}, 8, v{e}
    v_add_u32 v{fa}, s{t}, v{fa}
    v_bfe_u32 v{r}, v0, 2, 2
    v_and_b32 v{c8}, 3, v0
    v_lshlrev_b32 v{c8}, 3, v{c8}
    v_bfe_u32 v{g1}, v0, 4, 1
    v_bfe_u32 v{sw}, v0, 3, 1
    v_lshlrev_b32 v{sw}, 6, v{sw}
    v_lshl_add_u32 v{row}, v{half}, 3, v{r}
    s_lshl_b32 s{t}, s{ch}, 6
    v_lshl_or_b32 v{e}, v{g1}, 5, s{t}
    v_xor_b32 v{e}, v{e}, v{sw}
    v_add_u32 v{e}, v{e}, v{c8}
    v_lshl_add_u32 v{ra}, v{row}, 7, v{e}
    v_add_u32 v{ra}, 0x10000, v{ra}
    v_add_u32 v{ra1}, 0x10000, v{ra}
    v_lshlrev_b32 v{e}, 13, v{g1}
    v_add_u32 v{rf}, v{ra}, v{e}
    v_add_u32 v{rf1}, 0x10000, v{rf}
    v_xor_b32 v{rf2}, 32, v{rf}
    v_xor_b32 v{rf3}, 32, v{rf1}
    """.format(r=r, c8=c8, g1=g1, half=half, sw=sw, row=row, e=e, t=sT + 1, tg=sTG, ch=sCH, fa=vKB, ra=vRA, ra1=vRA + 1,
               rf=vRF, rf1=vRF + 1, rf2=vRF + 2, rf3=vRF + 3, rh=vRH, rh1=vRH + 1, sg=vSG))
    for k in range(1, 8):
        S("v_xor_b32 v%d, %d, v%d" % (vKB + k, 32 * k, vKB))


def raw_block(text):
    return [Call(lambda S: S.A(text))]


def prefetch_ops(t):
    a, b, c = sT + 1, sT + 2, sT + 3
    f = dict(a=a, b=b, c=c, i=sI, jj=sJJ, tg=sTG, ty=sTY, w=sW, t=t, u=t + 1, wa=sr4(sWA), wf=sr4(sWF), pa=sH1, pb=sH2)
    return raw_block("""
    s_and_b32 s{a}, s{i}, 7
    s_lshl_b32 s{a}, s{a}, 6
    v_add_u32 v{t}, s{a}, v0
    s_lshl_b32 s{b}, s{jj}, 7
    s_and_b32 s{a}, s{tg}, 1
    s_lshl_b32 s{a}, s{a}, 10
    s_add_u32 s{a}, s{a}, 1024
    s_cmp_eq_u32 s{ty}, 0
    s_cselect_b32 s{a}, s{a}, 0
    s_add_u32 s{pa}, s{a}, s{b}
    v_mul_u32_u24 v{u}, 3072, v{t}
    s_lshl_b32 s{a}, s{jj}, 1
    s_and_b32 s{c}, s{tg}, 1
    s_add_u32 s{a}, s{a}, s{c}
    s_lshr_b32 s{b}, s{jj}, 1
    s_add_u32 s{b}, s{b}, 24
    s_cmp_eq_u32 s{c}, 0
    s_cselect_b32 s{c}, s{jj}, 0
    s_cselect_b32 s{b}, 16, s{b}
    s_add_u32 s{b}, s{b}, s{c}
    s_cmp_eq_u32 s{ty}, 0
    s_cselect_b32 s{a}, s{b}, s{a}
    s_lshl_b32 s{pb}, s{a}, 7
    v_mul_u32_u24 v{t}, 3584, v{t}
    """.format(**f)) + raw_block("""
    s_cmp_ge_u32 s{w}, 2
    s_cbranch_scc1 L_nopfa
    buffer_load_dword v40, v{u}, {wa}, s{pa} offen
    L_nopfa:
    s_cmp_lt_u32 s{tg}, 2
    s_cbranch_scc1 L_nopfb
    buffer_load_dword v41, v{t}, {wf}, s{pb} offen
    L_nopfb:
    """.format(**f) if OPT["pf"] == 1 else """
    s_or_b32 s{a}, s{w}, s{ty}
    s_cmp_lg_u32 s{a}, 0
    s_cbranch_scc1 L_nopfa
    buffer_load_dword v40, v{u}, {wa}, s{pa} offen
    L_nopfa:
    s_lshl_b32 s{a}, s{ty}, 2
    s_or_b32 s{a}, s{a}, s{tg}
    s_cmp_lg_u32 s{a}, 6
    s_cbranch_scc1 L_nopfb
    buffer_load_dword v41, v{t}, {wf}, s{pb} offen
    L_nopfb:
    """.format(**f))


def prefetch_all(t):
    f = dict(w=sW, a=sT + 1, t=t, wa=sr4(sWA), wf=sr4(sWF), wd=sr4(sWD), wo=sr4(sWO))
    return raw_block("""
    s_cmp_lt_u32 s{w}, 4
    s_cbranch_scc1 L_pfa_end
    v_min_u32 v{t}, 55, v0
    v_lshlrev_b32 v{t}, 7, v{t}
    s_mul_i32 s{a}, s2, 7168
    s_cmp_eq_u32 s{w}, 5
    s_cbranch_scc1 L_pfa_5
    s_cmp_eq_u32 s{w}, 6
    s_cbranch_scc1 L_pfa_6
    s_cmp_eq_u32 s{w}, 7
    s_cbranch_scc1 L_pfa_7
    v_min_u32 v{t}, 6016, v{t}
    s_mul_i32 s{a}, s2, 6144
    buffer_load_dword v40, v{t}, {wa}, s{a} offen
    s_branch L_pfa_end
    L_pfa_5:
    buffer_load_dword v40, v{t}, {wf}, s{a} offen
    s_branch L_pfa_end
    L_pfa_6:
    v_add_u32 v{t}, s{a}, v{t}
    global_load_dword v40, v{t}, s[12:13]
    s_branch L_pfa_end
    L_pfa_7:
    buffer_load_dword v40, v{t}, {wd}, s{a} offen
    v_min_u32 v{t}, 1920, v{t}
    s_lshl_b32 s{a}, s2, 11
    buffer_load_dword v41, v{t}, {wo}, s{a} offen
    L_pfa_end:
    """.format(**f))


def prefetch2(add, hooks, t, sink):
    for n in range(9):
        mul, idx, srd = (7, n, sWD) if n < 7 else (2, n - 7, sWO)
        lab = "L_pf2_%d_%d" % (t, n)
        add(hooks, OPT["pf2"] + n * OPT["pf2step"], raw_block("""
        s_cmp_lg_u32 s{w}, {n}
        s_cbranch_scc1 {lab}
        s_lshr_b32 s{a}, s2, 3
        s_mul_i32 s{a}, s{a}, {mul}
        s_add_u32 s{a}, s{a}, {idx}
        s_lshl_b32 s{a}, s{a}, 13
        s_mov_b32 m0, {sink}
        v_lshlrev_b32 v{t}, 7, v0
        buffer_load_dword v{t}, {srd}, s{a} offen lds
        {lab}:
        """.format(w=sW, n=n & 7, lab=lab, a=sT + 4, mul=mul, idx=idx, t=t, srd=sr4(srd), sink=sink)))


def prefetch_h(t):
    l = "L_nopfh%d" % vR2[5]
    return O("""
    s_lshl_b32 s{a}, s{rb}, 1
    s_add_u32 s{a}, s{a}, s{th}
    s_mul_i32 s{a}, s{a}, {hf}
    s_lshl_b32 s{b}, s{cb}, 1
    s_add_u32 s{b}, s{b}, s{kq}
    s_mul_i32 s{b}, s{b}, {n}
    s_add_u32 s{a}, s{a}, s{b}
    v_min_u32 v{t}, 55, v0
    v_lshlrev_b32 v{t}, 7, v{t}
    """.format(a=sT + 1, b=sT + 2, rb=sRB, th=sTH, cb=sCB, kq=sKQ, hf=144 * 1024, n=56 * 128, t=t)), raw_block("""
    s_cmp_ge_u32 s{w}, 4
    s_cbranch_scc1 {l}
    buffer_load_dword v{t}, v{t}, {ws}, s{a} offen sc1
    {l}:
    """.format(w=sW, l=l, t=t, ws=sr4(sWS), a=sT + 1))


def setup2_scalar():
    return O("""
    v_bfe_u32 v{c}, v0, 4, 1
    v_lshlrev_b32 v{sg}, 15, v{c}
    v_lshl_or_b32 v{sg}, v{c}, 31, v{sg}
    s_lshl_b32 s{t}, s{cb}, 7
    s_lshl_b32 s{u}, s{w}, 15
    s_add_u32 s{uc}, s{t}, s{u}
    s_add_u32 s{ub}, s{uc}, s{u}
    s_lshl_b32 s{u}, s{u}, 1
    s_add_u32 s{ua}, s{ub}, s{u}
    s_mul_i32 s{t}, s{rb}, {hf2}
    s_lshl_b32 s{u}, s{w}, 11
    s_add_u32 s{bc}, s{t}, s{u}
    s_add_u32 s{bb}, s{bc}, s{u}
    s_lshl_b32 s{u}, s{u}, 1
    s_add_u32 s{ba}, s{bb}, s{u}
    s_lshl_b32 s{fp}, s{i}, 1
    s_add_u32 s{fp}, s{fp}, s{ty}
    s_lshl_b32 s{fp}, s{fp}, 3
    s_add_u32 s{fp}, s{fp}, s{jj}
    s_lshl_b32 s{fp}, s{fp}, 5
    s_add_u32 s{fp}, s{fp}, s{w}
    s_lshl_b32 s{fp}, s{fp}, 2
    s_add_u32 s{fp}, s{fp}, {flg}
    s_lshr_b32 s{fc}, s{rb}, 1
    s_lshl_b32 s{fc}, s{fc}, 4
    s_add_u32 s{fc}, s{fc}, s{w}
    s_lshl_b32 s{fc}, s{fc}, 4
    s_and_b32 s{t}, s{rb}, 1
    s_add_u32 s{fc}, s{fc}, s{t}
    s_lshl_b32 s{fc}, s{fc}, 3
    s_add_u32 s{fc}, s{fc}, {flg}
    s_lshl_b32 s{fk}, s{jj}, 10
    s_add_u32 s{fk}, s{fk}, {flk}
    s_lshl_b32 s{t}, s{i}, 2
    s_add_u32 s{t}, s{t}, s{tg}
    s_mul_i32 s{h0}, s{t}, {hf}
    v_lshrrev_b32 v{a}, 3, v0
    v_and_b32 v{b}, 7, v0
    v_bfe_u32 v{c}, v0, 4, 1
    v_lshlrev_b32 v{c}, 2, v{c}
    v_xor_b32 v{c}, v{c}, v{b}
    v_lshlrev_b32 v{d2}, 10, v{a}
    v_lshl_add_u32 v{d2}, v{c}, 4, v{d2}
    """.format(w=sW, cb=sCB, rb=sRB, t=sT + 1, u=sT + 2, ua=sUA, ub=sUB, uc=sUC, ba=sBA, bb=sBB, bc=sBC, ty=sTY,
               hf=144 * 1024, hf2=288 * 1024, fp=sFP, fc=sFC, fk=sFK, i=sI, jj=sJJ, tg=sTG, flg=FLG_OFF, flk=FLG_OFF + 32768, h0=sH0,
               a=vT, b=vT + 1, c=vT + 2, d2=vD2, sg=vSG))

def setup2_reads(t):
    r0, r1, r2, r3, r4, r5 = vR2
    return O("""
    v_bfe_u32 v{r}, v0, 2, 2
    v_lshrrev_b32 v{e}, 5, v0
    v_lshl_add_u32 v{r}, v{e}, 2, v{r}
    v_bfe_u32 v{e}, v0, 3, 2
    v_lshrrev_b32 v{f}, 1, v{e}
    v_and_b32 v{e}, 1, v{e}
    v_lshlrev_b32 v{e}, 6, v{e}
    v_lshl_or_b32 v{e}, v{f}, 5, v{e}
    v_and_b32 v{f}, 3, v0
    v_lshl_add_u32 v{e}, v{f}, 3, v{e}
    s_add_u32 s{s}, s{m0}, {u}
    v_lshl_add_u32 v{r3}, v{r}, 7, v{e}
    v_add_u32 v{r3}, s{s}, v{r3}
    v_xor_b32 v{r3}, 64, v{r3}
    v_add_u32 v{r4}, 0x10000, v{r3}
    """.format(r=t, e=t + 1, f=t + 2, s=sT + 1, m0=sM0, u=LDS_U, r3=r3, r4=r4)), O("""
    v_xor_b32 v{r0}, 64, v{r3}
    v_xor_b32 v{r1}, 64, v{r4}
    v_add_u32 v{r5}, 0x20000, v{r3}
    v_add_u32 v{r2}, 0x20000, v{r0}
    """.format(r0=r0, r1=r1, r2=r2, r3=r3, r4=r4, r5=r5))


vXO, vRW, vRR, vXR = 176, 177, 178, 180
RED_ROW, RED_SRC = 144, 64 * 144


def final_setup():
    return O("""
    s_lshl_b32 s{t}, s{rb}, 3
    s_add_u32 s{t}, s{t}, s{w}
    s_lshl_b32 s{t}, s{t}, 13
    s_lshl_b32 s{t1}, s{cb}, 7
    s_add_u32 s{t}, s{t}, s{t1}
    v_lshrrev_b32 v{a}, 3, v0
    v_and_b32 v{b}, 7, v0
    v_lshlrev_b32 v{xo}, 10, v{a}
    v_lshl_add_u32 v{xo}, v{b}, 4, v{xo}
    v_add_u32 v{xo}, s{t}, v{xo}
    buffer_load_dwordx4 {xr}, v{xo}, {x}, 0 offen
    s_lshl_b32 s{t}, s{w}, 3
    v_add_u32 v{a}, s{t}, v{a}
    v_mul_u32_u24 v{rr}, {row}, v{a}
    v_lshl_add_u32 v{rr}, v{b}, 4, v{rr}
    v_and_b32 v{a}, 31, v0
    v_mul_u32_u24 v{rw}, {row}, v{a}
    v_lshrrev_b32 v{a}, 5, v0
    v_lshl_add_u32 v{rw}, v{a}, 3, v{rw}
    s_mul_i32 s{t}, s{w}, {src}
    v_add_u32 v{rw}, s{t}, v{rw}
    s_mov_b32 s{s0}, 0x3f80
    s_mov_b32 s{s1}, 0x3f800000
    """.format(t=sT + 1, t1=sT + 2, rb=sRB, cb=sCB, w=sW, a=184, b=185, xo=vXO, rr=vRR, rw=vRW, xr=vr(vXR, 4), x=sr4(sX),
               row=RED_ROW, src=RED_SRC, s0=sT + 7, s1=sT + 8))


def red_write(t):
    nt, th = t >> 1, t & 1
    a = ACC[t]
    ops = []
    for qd in range(4):
        ops += [Op("v_cvt_pk_bf16_f32 v%d, v%d, v%d" % (a + 2 * qd + e, a + 4 * qd + 2 * e, a + 4 * qd + 2 * e + 1)) for e in range(2)]
        ops += O("ds_write_b64 v%d, %s offset:%d" % (vRW, vr(a + 2 * qd, 2), th * 32 * RED_ROW + nt * 64 + qd * 16))
    return ops


def phase2(S, vq, plan):
    staged, asked = set(), set(range(4))
    for it in plan:
        if isinstance(it, list):
            S.ops(it)
            continue
        what, n = it
        if what == "P":
            S.ops([pops(vq, n)])
        elif what == "S":
            while any(o.tag == "u%d" % n for _, g in vq.q for o in g if hasattr(o, "tag")):
                vq.pop(S)
            S.emit(WaitVM("u%d" % n))
            S.ops(w_reads(n))
            staged.add(n)
        elif what == "D":
            assert n - NU in staged
            S.emit(WaitLG("w%d" % (n - NU)))
            S.ops(sum(unit_dma(n), []))
            asked.add(("u", n))
        elif what == "H":
            S.ops(sum(h_loads(n), []))
            asked.add(n)
        else:
            assert n in asked and n in staged and not vq.touches("v%d" % hreg(n, 1)), n
            if n in (4, 8, 12, 14):
                stamp(S, 14 + (4, 8, 12, 14).index(n))
            nxt = []
            if NS <= n + 1 < 18:
                assert ("u", n + 1) in asked
                nxt = [WaitVM("u%d" % (n + 1))] + w_reads(n + 1)
                staged.add(n + 1)
            if n == 16:
                S.ops(nxt)
                continue
            if n == 17:
                for t in range(4):
                    S.ops([mfma2(16, t >> 1, t & 1), mfma2(17, t >> 1, t & 1)])
                    if t:
                        S.ops(red_write(t - 1))
                continue
            ms = [mfma2(n, t >> 1, t & 1) for t in range(4)]
            S.ops(ms[:1] + nxt + ms[1:])
    assert not vq.q
    stamp(S, 22)
    for k in range(4):
        S("v_lshlrev_b32 v%d, 16, v%d" % (vT + 2 * k, vXR + k))
        S("v_and_b32 v%d, s%d, v%d" % (vT + 2 * k + 1, sHI, vXR + k))
    S.ops(red_write(3))
    S.emit(WaitLG())
    S("s_barrier")
    for src in range(8):
        S("ds_read_b128 %s, v%d offset:%d" % (vr(128 + 4 * src, 4), vRR, src * RED_SRC))
    for src in range(8):
        for k in range(8):
            S("v_dot2c_f32_bf16 v%d, s%d, v%d" % (vT + k, sT + 7 + (k & 1), 128 + 4 * src + (k >> 1)))
    for k in range(4):
        S("v_cvt_pk_bf16_f32 v%d, v%d, v%d" % (vT + 8 + k, vT + 2 * k, vT + 2 * k + 1))
    S("buffer_store_dwordx4 %s, v%d, %s, 0 offen %s" % (vr(vT + 8, 4), vXO, sr4(sOUT), OPT["outfl"]))
    stamp(S, 23)
    if STAMPS:
        S.fence()
    stamp(S, 24)
    if STAMPS == "ends":
        S("v_writelane_b32 v%d, s100, 0" % C["st"])
    stamp_flush(S)


def late_plan(first_d, po):
    la = OPT["la"]
    plan = [("H", n) for n in range(4, 4 + la)]
    d = first_d
    for n in range(4, 18):
        if n == 14:
            plan.append([barrier()])
        while d < 18 and d <= n + OPT["lw"]:
            plan.append(("D", d))
            d += 1
        plan.append(("M", n))
        if n + la + 2 == 14:
            plan.append(po.sample())
        if n + la == 14:
            plan.append(po.check())
        if n + la < 18:
            plan.append(("H", n + la))
        if n == 10:
            plan.append(final_setup())
    return plan


def pops(vq, n):
    return Call(lambda S: [vq.pop(S) for _ in range(min(n, len(vq.q)))])


def paced(ops, vq, step):
    out = []
    for n, o in enumerate(ops):
        out.append(o)
        if n % step == step - 1:
            out.append(pops(vq, 1))
    return out


def barrier():
    c = Call(lambda S: S("s_barrier"))
    c.is_barrier = True
    return c


def common_sync(pre, post, hooks, lq):
    def add(d, k, ops):
        d.setdefault(k, []).extend(ops)
    if OPT.get("fine"):
        for n, g in enumerate(OPT["fine"]):
            add(hooks, g, [stamp_op(100 + n)])
    for g in range(0, 160, 32):
        add(hooks, g, [stamp_op(6 + g // 32)])
    p1 = Poll(184, sWS, sFC, 1, 15)
    add(hooks, OPT["e1"] - 12, p1.sample())
    add(hooks, OPT["e1"], p1.check() + [Call(lambda S: [lq.add(h_loads(n), 30.5 + n) for n in range(4)])])
    return add


def budgets_for(*ranges):
    def f(g):
        return OPT[[n for s_, n in ranges if s_ <= g][-1]]
    return f


def phi_first(fill, lds_phi, pa, at):
    fill.add(O("""
    v_bfe_u32 v{a}, v0, 2, 2
    v_lshrrev_b32 v{b}, 5, v0
    v_lshl_add_u32 v{a}, v{b}, 2, v{a}
    v_and_b32 v{b}, 3, v0
    v_lshlrev_b32 v{b}, 3, v{b}
    v_lshl_add_u32 v{a}, v{a}, 5, v{b}
    s_lshr_b32 s{s}, s{m0}, 1
    s_add_u32 s{s}, s{s}, {base}
    v_add_u32 v{a}, s{s}, v{a}
    """.format(a=pa, b=vT, s=sT + 1, m0=sM0, base=lds_phi)), at - 7)
    fill.add([WaitVM("phi")] + phi_reads(pa, 0), at)
    fill.add(phi_sign(), at + 2)


def phi_reads(pa, hh):
    return [Op("ds_read_b64_tr_b16 %s, v%d offset:%d" % (vr(vPHI + 2 * rd, 2), pa, hh * 512 + rd * 256)) for rd in range(2)]


def phi_sign():
    return [Op("v_xor_b32 v%d, v%d, v%d" % (vPHI + k, vSG, vPHI + k)) for k in range(4)]


def featmap_ops(fill, at, dsts, imms, pa, mid=None):
    hold2 = Call(lambda S: fill.hold(S.slot + 2))
    fill.add(O("v_mfma_f32_32x32x16_bf16 %s, %s, %s, 0" % (vr(vP, 16), vr(vPHI, 4), vr(vKB, 4))) + [hold2] + phi_reads(pa, 1), at)
    sm = epi_softmax(vP, vT, dsts[0], imms and imms[0])
    fill.add(sm[:20] + phi_sign() + sm[20:], at)
    fill.add(O("v_mfma_f32_32x32x16_bf16 %s, %s, %s, 0" % (vr(vP, 16), vr(vPHI, 4), vr(vKB + 4, 4))), at)
    if mid:
        fill.add(mid[1], mid[0])
    else:
        fill.add([hold2], at)
    fill.add(epi_softmax(vP, vT, dsts[1], imms and imms[1]), at)


def body_tk(S):
    A0, A1, A2, A3 = ACC
    lds_phi = 8192
    early = [99]
    rounds = [Round("kqv", sA0, [A0]), Round("kqv", sA1, [A1], swap=True), Round("dbl", sF0, [A0, A2]), Round("half", sF1, [A1])]
    vR2[:] = [2, 3, 14, 4, 5, 6]
    if STAMPS:
        S("v_mov_b32 v12, v14")
    C["st"] = 12
    S("s_add_u32 s%d, s%d, 1024" % (sA0, sA0))
    S("s_add_u32 s%d, s%d, 1024" % (sA1, sA0))
    urgent = O("""
    s_add_u32 s{t}, s{jj}, 16
    s_lshl_b32 s{t}, s{t}, 7
    s_lshl_b32 s{f1}, s{f0}, 1
    s_add_u32 s{f0}, s{f0}, s{t}
    s_lshl_b32 s{t}, s{jj}, 6
    s_add_u32 s{t}, s{t}, {l24}
    s_add_u32 s{f1}, s{f1}, s{t}
    """.format(t=sT + 1, jj=sJJ, f0=sF0, f1=sF1, l24=24 * 128))
    fill, pre, post, hooks, lq = Filler(), {}, {}, {}, VQ()
    add = common_sync(pre, post, hooks, lq)
    fill.add(urgent, 0)
    fill.add(setup2_scalar(), OPT.get("su0", 0))
    fill.add(O("""
    s_lshl_b32 s{t}, s{jj}, 1
    s_add_u32 s{t}, s{t}, s{ch}
    s_lshl_b32 s{t1}, s{t}, 10
    s_add_u32 s{h1}, s{h0}, s{t1}
    s_add_u32 s{h1}, s{h1}, {k96}
    s_lshl_b32 s{t1}, s{t}, 11
    s_add_u32 s{h0}, s{h0}, s{t1}
    s_add_u32 s{h0}, s{h0}, {k64}
    s_lshl_b32 s{t}, s{jj}, 4
    s_add_u32 s{t}, s{t}, s{i}
    s_mul_i32 s{kv}, s{t}, {part}
    s_add_u32 s{kv}, s{kv}, {kvp}
    s_and_b32 s{t}, s{tg}, 1
    s_lshl_b32 s{t}, s{t}, 7
    s_add_u32 s{fk}, s{fk}, s{t}
    s_lshr_b32 s{t}, s{tg}, 1
    s_lshl_b32 s{t}, s{t}, 9
    s_add_u32 s{fk}, s{fk}, s{t}
    s_lshl_b32 s{t}, s{ch}, 30
    s_add_u32 s{fk}, s{fk}, s{t}
    v_bfe_u32 v{a}, v0, 4, 1
    v_xor_b32 v{rh}, s{ch}, v{a}
    v_lshlrev_b32 v{rh}, 5, v{rh}
    v_lshl_add_u32 v{rh}, v{a}, 13, v{rh}
    v_and_b32 v{a}, 3, v0
    v_lshl_add_u32 v{rh}, v{a}, 3, v{rh}
    v_bfe_u32 v{a}, v0, 2, 2
    v_lshl_add_u32 v{rh}, v{a}, 6, v{rh}
    v_lshrrev_b32 v{b}, 5, v0
    v_lshl_add_u32 v{rh}, v{b}, 9, v{rh}
    v_add_u32 v{rh}, 0x10000, v{rh}
    v_and_b32 v{a}, 31, v0
    s_lshl_b32 s{t}, s{tg}, 5
    v_add_u32 v{a}, s{t}, v{a}
    v_lshlrev_b32 v{a}, 4, v{a}
    v_mul_u32_u24 v{b}, {pl2}, v{b}
    s_mul_i32 s{t}, s{ch}, {pl8}
    v_add3_u32 v{pw}, v{a}, v{b}, s{t}
    """.format(t=sT + 1, t1=sT + 2, jj=sJJ, ch=sCH, tg=sTG, i=sI, f0=sF0, f1=sF1, h0=sH0, h1=sH1, kv=sKV, fk=sFK, l24=24 * 128,
               k96=96 * 1024, k64=64 * 1024, part=PART, kvp=KVP_OFF, a=vT, b=vT + 1, pw=vPW, pl2=2 * PLANE, pl8=8 * PLANE, rh=vRH)) + [deadline(26, "setup")], 0)
    add(post, OPT["xdone"], [(OPT["xdone"] + 0.5, phi_dma(lds_phi))])
    imms = [[(hh * 4 + part) * PLANE for part in range(2)] for hh in range(2)]
    vV, va = vT + 8, vT + 2
    mid = O("""
    s_add_u32 s{t}, s{m0}, {vf}
    v_add_u32 v{va}, s{t}, v{l16}
    """.format(t=sT + 1, m0=sM0, vf=LDS_VF, va=va, l16=vL16)) + pack8(vV, A1)
    wr = [O("ds_write_b128 v%d, %s offset:%d" % (va, vr(vV + 4 * t, 4), t * 1024)) for t in range(2)]
    mid = mid[:6] + wr[0] + mid[6:] + wr[1]
    half_addr = O("""
    v_add_u32 v{rh1}, 0x10000, v{rh}
    v_lshrrev_b32 v{e}, 2, v0
    v_mul_u32_u24 v{dh}, 3584, v{e}
    v_and_b32 v{e}, 3, v0
    s_lshl_b32 s{t}, s{ch}, 1
    v_xor_b32 v{e}, s{t}, v{e}
    v_lshl_add_u32 v{dh}, v{e}, 4, v{dh}
    """.format(e=A3 + 14, rh=vRH, rh1=vRH + 1, dh=vDA, t=sT + 4, ch=sCH))
    add(hooks, 84, half_addr[:3])
    add(hooks, 87, half_addr[3:])
    ones = [Op("v_mov_b32 v%d, 0x3f803f80" % (A3 + 8 + k)) for k in range(2)]
    ones += O("""
    v_lshlrev_b32 v{a}, 3, v0
    v_and_b32 v{a}, 8, v{a}
    ds_write_b64 v{a}, {d} offset:{o}
    """.format(a=A3 + 10, d=vr(A3 + 8, 2), o=LDS_ONES))
    add(hooks, 30, ones)
    mid += [deadline(92, "V fragments")]
    pa, vb, stp, sa = A3, A3 + 1, A3 + 2, A3 + 3
    fill.add(O("""
    s_and_b32 s{hh}, s{w}, 1
    s_mul_i32 s{t1}, s{tg}, {pl4}
    v_and_b32 v{pa}, 1, v0
    v_bfe_u32 v{g1}, v0, 4, 1
    v_lshl_add_u32 v{pa}, v{pa}, 1, v{g1}
    v_mul_u32_u24 v{pa}, {pl}, v{pa}
    v_bfe_u32 v{e}, v0, 2, 2
    v_lshrrev_b32 v{half}, 5, v0
    v_lshl_add_u32 v{e}, v{half}, 2, v{e}
    v_lshl_add_u32 v{pa}, v{e}, 4, v{pa}
    v_bfe_u32 v{e}, v0, 1, 1
    v_lshlrev_b32 v{e}, 3, v{e}
    v_add3_u32 v{pa}, v{pa}, v{e}, s{t1}
    v_cmp_eq_u32 vcc, s{hh}, v{g1}
    s_lshr_b32 s{t1}, s{tg}, 1
    s_lshl_b32 s{t1}, s{t1}, 13
    s_add_u32 s{t1}, s{t1}, {vf}
    v_add_u32 v{e}, s{t1}, v{l16}
    v_mov_b32 v{vb}, {ones}
    v_cndmask_b32 v{vb}, v{vb}, v{e}, vcc
    v_mov_b32 v{e}, 1024
    v_cndmask_b32 v{stp}, 0, v{e}, vcc
    v_and_b32 v{e}, 15, v0
    v_lshl_add_u32 v{e}, v{half}, 4, v{e}
    v_lshlrev_b32 v{e}, 4, v{e}
    s_lshl_b32 s{t1}, s{tg}, 9
    v_add_u32 v{e}, s{t1}, v{e}
    s_lshl_b32 s{t1}, s{tg}, 5
    s_add_u32 s{t1}, s{t1}, 2048
    v_lshl_add_u32 v{sa}, v{half}, 4, s{t1}
    v_cndmask_b32 v{sa}, v{sa}, v{e}, vcc
    s_lshl_b32 s{t1}, s{ch}, 30
    v_add_u32 v{sa}, s{t1}, v{sa}
    """.format(hh=sT + 3, w=sW, tg=sTG, ch=sCH, t1=sT + 2, pl4=4 * PLANE, pl=PLANE, pa=pa, g1=A3 + 4, e=A3 + 5, half=A3 + 6,
               vf=LDS_VF, vb=vb, stp=stp, l16=vL16, ones=LDS_ONES, sa=sa)), 0)

    phi_first(fill, lds_phi, vRH + 1, 29)
    fill.add(pack8(vKB, A0), 33)
    featmap_ops(fill, 35, [vKB, vKB], imms, vRH + 1, (66, mid))
    fill.add([Call(lambda S: fill.hold(S.slot + 1)), WaitLG("pw"), mark("kvin"), barrier()], 66)
    def kv_block(S):
        after_barrier("kvin").fn(S)
        skip = S.A.uid("L_nokv")
        S("s_cmp_lg_u32 s%d, 0" % sCH)
        S.A("s_cbranch_scc1 " + skip)
        T = S.clone()
        buf = lambda n: (vT, vT + 8, A3 + 4)[n % 3]

        def rd(n):
            o = 256 * n
            T("ds_read_b64_tr_b16 %s, v%d offset:%d" % (vr(buf(n), 2), pa, o))
            T("ds_read_b64_tr_b16 %s, v%d offset:%d" % (vr(buf(n) + 2, 2), pa, o + 128))
            T("ds_read_b128 %s, v%d" % (vr(buf(n) + 4, 4), vb))
            T("v_add_u32 v%d, v%d, v%d" % (vb, vb, stp))
        rd(0)
        rd(1)
        for n in range(8):
            if n + 2 < 8:
                rd(n + 2)
            T("v_mfma_f32_32x32x16_bf16 %s, %s, %s, %s" % (vr(vP, 16), vr(buf(n), 4), vr(buf(n) + 4, 4), vr(vP, 16) if n else "0"))
        S.label(skip)
        S.hist.append((Op("v_mfma_f32_32x32x16_bf16 %s, v[0:3], v[0:3], 0" % vr(vP, 16)), S.pos - 1))
        S.count += T.count
    fill.add([Call(kv_block), Call(lambda S: fill.hold(S.slot + 2))], 66)
    fill.add(pack8(vT + 8, vP), 66)
    for t in range(2):
        fill.add(O("buffer_store_dwordx4 %s, v%d, %s, s%d offen offset:%d sc1" % (vr(vT + 8 + 4 * t, 4), sa, sr4(sWS), sKV, t * 2176), "kvst"), 66)

    def kv_publish(S):
        at = S.slot + OPT["acklag"]
        print("  kv stores at slot %d, arrival at slot %d" % (S.slot, at))
        add(hooks, at, arrive(["kvst"], vT + 20, sFK, 0))
        early[0] = (S.slot + OPT["dist"] + 1) // 8 + 1
    fill.add([Call(kv_publish)] + sample_addr_ops(vT + 4, lq), 66)
    init_poll(add, hooks, pre, A3 + 12)
    if OPT["pf2"]:
        prefetch2(add, hooks, A3 + 4, 59392)
    fill.add(sum(setup2_reads(vT + 5), []), 126)
    fill.add(epi_silu(A0, vT, sH0, 0, "e2"), 130)
    fill.add(epi_silu(A2, vT + 8, sH0, 1024, "e2") + [deadline(161, "silu")], 130)
    main_loop(S, rounds, fill, budgets_for((0, "g_lo"), (33, "g_k"), (110, "g_lo"), (128, "g_tail")), pre, post, hooks, early, lq,
              1, OPT["vlast_k"])
    pm, po = Poll(60, sWS, sFC, 2, 255), Poll(190, sWS, sFC, 3, 15)
    plan = [paced(epi_silu(A1, vT, sH1, 0, "ll"), lq, OPT["pace"]) + [stamp_op(11)], ("S", 0), ("S", 1), ("D", 9), ("S", 2), ("D", 10)]
    plan += [arrive(["e2", "ll"], vT, sFP, 2) + [stamp_op(12)]]
    plan += [("S", 3), ("D", 11), ("M", 0), ("S", 4), ("D", 12), ("M", 1), ("S", 5), ("D", 13), ("M", 2), ("S", 6), pm.sample(),
             ("M", 3), ("S", 7), ("S", 8), pm.check() + [stamp_op(29)]]
    phase2(S, lq, plan + late_plan(14, po))


def body_tq(S):
    A0, A1, A2, A3 = ACC
    lds_phi = 8192
    vR2[:] = [2, 3, 10, 8, 9, 12]
    C["st"] = 14
    rounds = [Round("dbl", sF0, [A2, A3]), Round("kqv", sA0, [A0]), Round("dbl", sF1, [A1, A0])]
    S("""
    s_lshl_b32 s{t}, s{jj}, 8
    s_add_u32 s{f0}, s{f0}, s{t}
    s_add_u32 s{f1}, s{f0}, 128
    """.format(t=sT + 1, jj=sJJ, f0=sF0, f1=sF1))
    fill, pre, post, hooks, lq = Filler(), {}, {}, {}, VQ()
    add = common_sync(pre, post, hooks, lq)
    fill.add(setup2_scalar(), OPT.get("su0", 0))
    fill.add(O("""
    s_lshl_b32 s{t}, s{jj}, 1
    s_add_u32 s{t}, s{t}, s{ch}
    s_lshl_b32 s{t1}, s{t}, 11
    s_add_u32 s{h2}, s{h0}, s{t1}
    s_add_u32 s{h2}, s{h2}, {k112}
    s_lshl_b32 s{t}, s{jj}, 2
    s_add_u32 s{t}, s{t}, s{ch}
    s_lshl_b32 s{t1}, s{t}, 11
    s_add_u32 s{h0}, s{h0}, s{t1}
    s_add_u32 s{h1}, s{h0}, 4096
    s_mul_i32 s{kv}, s{jj}, {p16}
    s_add_u32 s{kv}, s{kv}, {kvp}
    """.format(t=sT + 1, t1=sT + 2, jj=sJJ, ch=sCH, h0=sH0, h1=sH1, h2=sH2, kv=sKV, fk=sFK, fd=sFD, k112=112 * 1024, p16=16 * PART,
               kvp=KVP_OFF)) + [deadline(28, "setup")], 0)
    add(post, 4, [(4.5, phi_dma(lds_phi))])
    fill.add(setup2_reads(vT)[0], 16)
    phi_first(fill, lds_phi, 12, 44)
    fill.add(epi_silu(A2, vP, sH0, 0, "e1"), 66)
    fill.add(epi_silu(A3, vP + 8, sH0, 1024, "e1") + [deadline(100, "silu")], 66)
    def clear(S):
        S("""
        s_lshl_b32 s{t}, s2, 3
        s_add_u32 s{one}, s{t}, s{w}
        s_sub_u32 s{one}, s{one}, 1024
        v_lshlrev_b32 v{a}, 7, v0
        v_mov_b32 v{b}, 1
        s_cmp_ge_u32 s{one}, 5
        """.format(t=sT + 4, w=sW, one=sONE, a=A1 + 4, b=A1 + 5))
        S.A("s_cbranch_scc1 L_noclear")
        for n in range(4):
            S.A("v_mov_b32 v%d, 0" % (A1 + 8 + n))
        S.A("s_lshl_b32 s%d, s%d, 13" % (sT + 4, sW))
        S.A("s_add_u32 s%d, s%d, %d" % (sT + 4, sT + 4, FLG_OFF))
        for n in range(2):
            S.A("buffer_store_dwordx4 %s, v%d, %s, s%d offen offset:%d sc1" % (vr(A1 + 8, 4), A1 + 4, sr4(sWS), sT + 4, 16 * n))
        S.label("L_noclear")
        S.marks["clear"] = S.vm_issued

    def cleared(S):
        assert S.vm_issued - len(S.vm) > S.marks["clear"]
        S.marks["cleared"] = S.barriers

    def raise_flag(S):
        assert S.barriers > S.marks["cleared"]
        S("s_cmp_lg_u32 s%d, 0" % sONE)
        S.A("s_cbranch_scc1 L_noflag")
        S.A("buffer_store_dword v%d, v%d, %s, 0 offen sc1" % (A1 + 5, A1 + 4, sr4(sDBG)))
        S.label("L_noflag")
    add(hooks, 30, [Call(cleared)])
    add(hooks, 6, [Call(clear)])
    add(hooks, 38, [Call(raise_flag)])
    init_poll(add, hooks, pre, A1)
    if OPT["pf2"]:
        prefetch2(add, hooks, A1 + 2, 0)
    fill.add([Call(lambda S: add(hooks, S.slot + OPT["acklag"], arrive(["e1"], A3, sFP, 1)))], 66)
    add(hooks, 98, pack8(vKB, A0))
    featmap_ops(fill, 99, [vPQ, vPQ + 8], None, 12)
    fill.add([deadline(161, "q softmax")], 99)
    add(hooks, 125, sample_addr_ops(A3, lq))
    add(hooks, 150, setup2_reads(vT + 5)[1])
    tail = epi_silu(A1, vT, sH1, 0, "ll") + epi_silu(A0, vT + 8, sH1, 1024, "ll") + [stamp_op(11)]
    pk = Poll(186, sWS, sFK, 16, 15, 185, True)
    add(hooks, OPT["kvc"] - 8, O("""
    v_and_b32 v{a}, 1, v0
    v_lshlrev_b32 v{a}, 7, v{a}
    v_bfe_u32 v{t}, v0, 1, 1
    v_lshl_or_b32 v{a}, v{t}, 9, v{a}
    v_lshrrev_b32 v{t}, 2, v0
    v_lshl_or_b32 v{a}, v{t}, 24, v{a}
    """.format(a=185, t=186)) + pk.sample())
    KB, ZB, ks, zs, e = A2, 176, vT + 16, vT + 24, 188
    sel = ("s%d" % (sT + 7), "s%d" % (sT + 8))
    skv = sFD

    def z_only(body):
        def fn(S):
            skip = S.A.uid("L_noz")
            S("s_cmp_lg_u32 s%d, 3" % sTG)
            S.A("s_cbranch_scc1 " + skip)
            body(S.clone())
            S.label(skip)
        return Call(fn)

    def z_loads(T):
        T("""
        v_lshrrev_b32 v{e}, 4, v0
        v_mul_u32_u24 v{za}, {part}, v{e}
        v_bfe_u32 v{e}, v0, 3, 1
        v_mul_u32_u24 v{e}, 2176, v{e}
        v_add_u32 v{za}, v{za}, v{e}
        v_and_b32 v{e}, 7, v0
        v_lshl_add_u32 v{za}, v{e}, 4, v{za}
        s_add_u32 s{t}, s{kv}, {p4}
        buffer_load_dwordx4 {z0}, v{za}, {ws}, s{kv} offen offset:2048 sc1
        buffer_load_dwordx4 {z1}, v{za}, {ws}, s{t} offen offset:2048 sc1
        """.format(e=e, za=e + 1, part=PART, t=sT, kv=skv, p4=4 * PART, z0=vr(ZB, 4), z1=vr(ZB + 4, 4), ws=sr4(sWS)))

    kvget = O("""
    s_mul_i32 s{kv}, s{ch}, {p8}
    s_add_u32 s{kv}, s{kv}, s{base}
    s_lshr_b32 s{t}, s{tg}, 1
    s_mul_i32 s{t}, s{t}, 2176
    s_and_b32 s{t1}, s{tg}, 1
    s_lshl_b32 s{t1}, s{t1}, 10
    s_add_u32 s{t}, s{t}, s{t1}
    v_add_u32 v{ka}, s{t}, v{l16}
    s_mov_b32 {s0}, 0x3f80
    s_mov_b32 {s1}, 0x3f800000
    """.format(kv=skv, ch=sCH, p8=8 * PART, base=sKV, t=sT + 4, t1=sT + 5, tg=sTG, ka=e + 2, l16=vL16, s0=sel[0], s1=sel[1]))
    add(hooks, OPT["kvc"] - 4, kvget)
    kvl = [O("s_add_u32 s%d, s%d, %d" % (sT, skv, i * PART)) +
           O("buffer_load_dwordx4 %s, v%d, %s, s%d offen sc1" % (vr(KB + 4 * i, 4), e + 2, sr4(sWS), sT)) for i in range(8)]
    add(hooks, OPT["kvc"], pk.check() + [barrier(), stamp_op(25), z_only(z_loads), Call(lambda S: lq.add(kvl, 25))])
    ar = 192
    addr = O("""
    s_lshl_b32 s{t}, s{ch}, 13
    s_and_b32 s{t1}, s{tg}, 1
    s_lshl_b32 s{t1}, s{t1}, 12
    s_add_u32 s{t}, s{t}, s{t1}
    s_lshr_b32 s{t1}, s{tg}, 1
    s_lshl_b32 s{t1}, s{t1}, 10
    s_add_u32 s{t}, s{t}, s{t1}
    v_lshrrev_b32 v{ar}, 5, v0
    v_lshlrev_b32 v{e}, 11, v{ar}
    v_bfe_u32 v{f}, v0, 4, 1
    v_lshl_add_u32 v{e}, v{f}, 9, v{e}
    v_and_b32 v{f}, 15, v0
    v_lshl_add_u32 v{e}, v{f}, 4, v{e}
    v_add_u32 v{e}, s{t}, v{e}
    v_and_b32 v{f}, 31, v0
    v_min_u32 v{f}, 16, v{f}
    v_lshl_add_u32 v{ar}, v{ar}, 5, v{f}
    v_lshlrev_b32 v{ar}, 4, v{ar}
    s_lshl_b32 s{t}, s{ch}, 12
    v_add_u32 v{ar}, s{t}, v{ar}
    """.format(t=sT + 1, t1=sT + 2, tg=sTG, ch=sCH, ar=ar, e=e + 3, f=e + 1))
    unpack = lambda d, s_, k: "v_and_b32 v%d, s%d, v%d" % (d, sHI, s_) if k & 1 else "v_lshlrev_b32 v%d, 16, v%d" % (d, s_)
    summing = []
    for i in range(8):
        for k in range(8):
            src = KB + 4 * i + (k >> 1)
            summing += O("v_dot2c_f32_bf16 v%d, %s, v%d" % (ks + k, sel[k & 1], src) if i else unpack(ks + k, src, k))
    summing += [Op("v_cvt_pk_bf16_f32 v%d, v%d, v%d" % (KB + k, ks + 2 * k, ks + 2 * k + 1)) for k in range(4)]
    summing += O("ds_write_b128 v%d, %s" % (e + 3, vr(KB, 4)))

    def z_sum(T):
        for n in range(2):
            for k in range(8):
                src = ZB + 4 * n + (k >> 1)
                T("v_dot2c_f32_bf16 v%d, %s, v%d" % (zs + k, sel[k & 1], src) if n else unpack(zs + k, src, k))
        for sw in ("v_permlane16_swap_b32", "v_permlane32_swap_b32"):
            T.ops([Op("v_mov_b32 v%d, v%d" % (ZB + k, zs + k)) for k in range(8)])
            T.ops([Op("%s v%d, v%d" % (sw, zs + k, ZB + k)) for k in range(8)])
            T.ops([Op("v_add_f32 v%d, v%d, v%d" % (zs + k, zs + k, ZB + k)) for k in range(8)])
        T.ops([Op("v_cvt_pk_bf16_f32 v%d, v%d, v%d" % (ZB + k, zs + 2 * k, zs + 2 * k + 1)) for k in range(4)])
        T("""
        v_bfe_u32 v{zw}, v0, 1, 2
        v_lshlrev_b32 v{zw}, 11, v{zw}
        v_bfe_u32 v{e}, v0, 3, 1
        v_lshl_add_u32 v{zw}, v{e}, 10, v{zw}
        v_and_b32 v{e}, 1, v0
        v_lshl_add_u32 v{zw}, v{e}, 9, v{zw}
        s_lshl_b32 s{t}, s{ch}, 13
        v_add_u32 v{zw}, s{t}, v{zw}
        ds_write_b128 v{zw}, {zd} offset:256
        """.format(zw=zs, e=zs + 1, zd=vr(ZB, 4), t=sT + 1, ch=sCH))
        T.fence(vm=False)
    summing = [Call(lambda S: S.need(["v%d" % KB])), z_only(z_sum)] + summing + [WaitLG()]
    AFR, D = A2, [vT, vT + 16]
    ops = []
    seq = [(hh, t, hf) for hf in range(2) for t in range(2) for hh in range(2)]
    for n, (hh, t, hf) in enumerate(seq):
        ops += O("ds_read_b128 %s, v%d offset:%d" % (vr(AFR + 4 * n, 4), ar, hf * 8192 + hh * 2048 + t * 1024))
    for n, (hh, t, hf) in enumerate(seq):
        acc = vr(D[hh], 16)
        ops += O("v_mfma_f32_32x32x16_bf16 %s, %s, %s, %s" % (acc, vr(AFR + 4 * n, 4), vr(vPQ + 8 * hh + 4 * t, 4), acc if n > 1 else "0"))
    for txt in ("v_add_f32 v{d}, 0x358637bd, v{d}", "v_rcp_f32 v{d}, v{d}"):
        ops += [Op(txt.format(d=a + 8)) for a in D]
    for a in D:
        ops += [Op("v_mul_f32 v%d, v%d, v%d" % (a + r, a + r, a + 8)) for r in range(8)]
        ops += [Op("v_cvt_pk_bf16_f32 v%d, v%d, v%d" % (a + r, a + 2 * r, a + 2 * r + 1)) for r in range(4)]
        ops += O("buffer_store_dwordx4 %s, v%d, %s, s%d offen offset:%d sc1" % (vr(a, 4), vL16, sr4(sWS), sH2, D.index(a) * 1024), "oo")
    main_loop(S, rounds, fill, budgets_for((0, "g_lo"), (64, "g_e1"), (96, "g_q")), pre, post, hooks, [OPT["early_q"]], lq,
              OPT["xstep_q"], OPT["vlast_q"])
    pm, po = Poll(60, sWS, sFC, 2, 255), Poll(190, sWS, sFC, 3, 15)
    cut = lambda l, n: [l[len(l) * q // n:len(l) * (q + 1) // n] for q in range(n)]
    flush = Call(lambda S: [lq.pop(S) for _ in range(lq.due(25))])
    plan = [[flush] + paced(tail, lq, OPT["pace_q"]) + addr + summing + [stamp_op(28), barrier()] + ops[:16]]
    plan += [arrive(["ll"], 194, sFP, 2) + [stamp_op(27)], ops[16:], [stamp_op(12)]]
    plan += [("S", 0), ("S", 1), ("D", 9), ("S", 2), ("D", 10), ("S", 3), ("D", 11), ("M", 0), ("S", 4), ("D", 12)]
    plan += [arrive(["oo"], 62, sFP, 3), pm.sample(), ("M", 1), ("S", 5), ("D", 13), ("M", 2), ("S", 6), ("M", 3), ("S", 7), ("S", 8)]
    plan += [pm.check() + [stamp_op(29)]]
    phase2(S, lq, plan + late_plan(14, po))


HEADER = open("cdna_kernels/%s.s.ref" % NAME).read().split("; Override launch")[0]


def gen_probe(A, op, lo, hi, idx, mult):
    kernel_begin(A, "z_kernel")
    A("s_cmp_ge_u32 s2, 1")
    A("s_cbranch_scc1 L_z_end")
    A("s_load_dwordx2 s[4:5], s[0:1], 80")
    A("s_waitcnt lgkmcnt(0)")
    A("s_add_u32 s4, s4, %d" % STAMP_OFF)
    A("s_addc_u32 s5, s5, 0")
    A("v_lshlrev_b32 v1, 11, v0")
    for j in range(4):
        A("global_load_dword v%d, v1, s[4:5]" % (4 + j))
        A("global_load_dword v%d, v1, s[4:5] offset:%d" % (8 + j, idx * 4))
        A("v_add_u32 v1, 0x20000, v1")
    A("s_waitcnt vmcnt(0)")
    A("v_readlane_b32 s6, v4, 0")
    A("s_mov_b32 s8, 0")
    A("s_mov_b32 s9, %d" % (-100000 if op == "max" else 100000))
    for j in range(4):
        for l in range(64):
            A("v_readlane_b32 s10, v%d, %d" % (4 + j, l))
            A("s_sub_u32 s10, s10, s6")
            A("s_min_i32 s8, s8, s10")
            if lo <= 64 * j + l < hi:
                A("v_readlane_b32 s10, v%d, %d" % (8 + j, l))
                A("s_sub_u32 s10, s10, s6")
                A("s_%s_i32 s9, s9, s10" % op)
    A("s_sub_u32 s9, s9, s8")
    A("s_add_u32 s8, s8, s6")
    A("s_min_u32 s9, s9, 20000")
    A("s_mul_i32 s9, s9, %d" % mult)
    A("s_add_u32 s9, s9, 10000")
    A("s_mov_b32 s12, 0")
    A.label("L_z_spin")
    A("s_memrealtime s[10:11]")
    A("s_add_u32 s12, s12, 1")
    A("s_waitcnt lgkmcnt(0)")
    A("s_sub_u32 s10, s10, s8")
    A("s_cmp_ge_u32 s12, 0x100000")
    A("s_cbranch_scc1 L_z_end")
    A("s_cmp_lt_u32 s10, s9")
    A("s_cbranch_scc1 L_z_spin")
    A.label("L_z_end")
    A("s_endpgm")


def gen(path, probe=None):
    A = Asm()
    A.raw(HEADER.rstrip())
    if probe:
        A.raw("; @launch kernel=%s_kernel grid=(256,1,1) block=(512,1,1) lds=163840" % NAME)
        A.raw("; @launch kernel=z_kernel grid=(1,1,1) block=(64,1,1) lds=0")
    else:
        A.raw("; @launch grid=(256,1,1) block=(512,1,1) lds=163840")
    A.raw('.amdgcn_target "amdgcn-amd-amdhsa--gfx950"')
    A.raw(".text")
    kernel_begin(A, NAME + "_kernel")
    S = Stream(A)
    prologue(S)
    S("s_cmp_eq_u32 s%d, 1" % sTY)
    A("s_cbranch_scc1 L_tq")
    T = S.clone()
    body_tk(S)
    A("s_endpgm")
    A.label("L_tq")
    body_tq(T)
    A.label("L_end")
    A.label("L_last")
    A("s_endpgm")
    print("TK %d instrs (%d nop states), TQ %d instrs (%d nop states)" % (S.count, S.nops, T.count, T.nops))
    if probe:
        gen_probe(A, *probe)
    A.raw('.section .rodata,"a"')
    if probe:
        A.raw(descriptor("z_kernel", 16))
    A.raw(descriptor(NAME + "_kernel", 256))
    open(path, "w").write(A.text())


if __name__ == "__main__":
    gen(sys.argv[1] if len(sys.argv) > 1 else "cdna_kernels/%s.s" % NAME)
```

```python
import re

REG = re.compile(r"\b([vas])(\d+)\b|\b([vas])\[(\d+):(\d+)\]|\b(vcc|exec|m0|scc)(?:_lo|_hi)?\b")
TRANS = ("v_exp_f32", "v_log_f32", "v_rcp_f32", "v_rsq_f32", "v_sqrt_f32", "v_sin_f32", "v_cos_f32")


def regs_of(tok):
    out = []
    for m in REG.finditer(tok):
        if m.group(1):
            out.append(m.group(1) + m.group(2))
        elif m.group(3):
            out += [m.group(3) + str(i) for i in range(int(m.group(4)), int(m.group(5)) + 1)]
        else:
            out.append(m.group(6))
    return out


def split_ops(rest):
    ops, depth, cur = [], 0, ""
    for ch in rest:
        if ch in "[(":
            depth += 1
        if ch in "])":
            depth -= 1
        if ch == "," and depth == 0:
            ops.append(cur.strip())
            cur = ""
        else:
            cur += ch
    if cur.strip():
        ops.append(cur.strip())
    return ops


class Op:
    __slots__ = ("text", "mn", "kind", "defs", "uses", "tag", "cost", "srcc", "srcab", "dpp", "passes")

    def __init__(self, text, tag=None):
        self.text = text.strip()
        self.tag = tag
        parts = self.text.split(None, 1)
        mn = self.mn = parts[0]
        ops = split_ops(parts[1]) if len(parts) > 1 else []
        self.defs, self.uses, self.srcc, self.srcab = [], [], [], []
        self.dpp = "_dpp" in mn or "quad_perm" in self.text or "row_" in self.text
        self.passes = 0
        self.cost = 1
        R = [regs_of(o) for o in ops]
        flat = lambda l: [r for x in l for r in x]
        if mn.startswith("v_mfma"):
            self.kind = "mfma"
            self.passes = 8 if "32x32" in mn else 4
            self.defs = R[0]
            self.srcab = R[1] + R[2]
            self.srcc = R[3]
            self.uses = self.srcab + self.srcc
            self.cost = 2
        elif mn.startswith("ds_read"):
            self.kind = "dsr"
            self.defs, self.uses = R[0], flat(R[1:])
        elif mn.startswith("ds_"):
            self.kind = "dsw"
            self.uses = flat(R)
        elif mn.startswith("buffer_load") or mn.startswith("global_load"):
            if re.search(r"\blds\b", self.text) or "_lds_" in mn:
                self.kind = "dma"
                self.uses = flat(R) + ["m0"]
            else:
                self.kind = "vld"
                self.defs, self.uses = R[0], flat(R[1:])
        elif mn.startswith("buffer_store") or mn.startswith("global_store"):
            self.kind = "vst"
            self.uses = flat(R)
        elif mn.startswith("buffer_atomic") or mn.startswith("global_atomic"):
            self.kind = "vst"
            self.uses = flat(R)
            assert "sc0" not in self.text, "returning atomics are not modelled"
        elif mn.startswith("buffer_inv") or mn.startswith("buffer_wbl2"):
            self.kind = "vst"
        elif mn.startswith("v_cmp"):
            self.kind = "valu"
            self.defs, self.uses = R[0], flat(R[1:])
        elif mn.startswith("v_permlane") and "swap" in mn:
            self.kind = "valu"
            self.defs = R[0] + R[1]
            self.uses = R[0] + R[1]
        elif mn.startswith("v_"):
            self.kind = "valu"
            self.defs, self.uses = R[0], flat(R[1:])
            if mn.startswith(("v_fmac", "v_dot2c", "v_writelane", "v_pk_fmac")) or self.dpp:
                self.uses = self.uses + R[0]
            if mn.startswith(("v_cndmask",)) and len(ops) == 3:
                self.uses.append("vcc")
            if mn.startswith(TRANS):
                self.cost = 2
        elif mn in ("s_barrier", "s_nop", "s_waitcnt", "s_sleep", "s_setprio", "s_endpgm"):
            self.kind = mn
        elif mn.startswith("s_load") or mn.startswith("s_memtime") or mn.startswith("s_memrealtime"):
            self.kind = "smem"
            self.defs, self.uses = R[0], flat(R[1:])
        elif mn.startswith("s_cmp") or mn.startswith("s_bitcmp"):
            self.kind = "salu"
            self.defs, self.uses = ["scc"], flat(R)
        elif mn.startswith("s_cbranch") or mn == "s_branch":
            self.kind = "branch"
        elif mn.startswith("s_"):
            self.kind = "salu"
            self.defs, self.uses = R[0], flat(R[1:])
            if "saveexec" in mn:
                self.defs = self.defs + ["exec"]
        else:
            raise ValueError("unknown instruction " + text)
        self.cost = self._cost(len(ops))

    def _cost(self, nops):
        k = self.kind
        if k == "valu":
            if self.trans:
                return 8
            if nops >= 4 or self.mn.startswith(("v_fmac", "v_fmamk", "v_fmaak")):
                return 6
            if self.mn.startswith("v_cvt_pk") or "0x" in self.text or self.dpp:
                return 4.5
            return 4
        if k == "dsr":
            return 2
        if k == "dsw":
            return 10
        if k in ("vld", "vst", "dma"):
            return 18
        if k == "salu":
            return 3
        return 0

    @property
    def trans(self):
        return self.mn.startswith(TRANS)


class WaitVM(object):
    kind = "waitvm"
    cost = 0

    def __init__(self, *tags):
        self.tags = set(tags)


class WaitLG(object):
    kind = "waitlg"
    cost = 0

    def __init__(self, *tags):
        self.tags = set(tags)


class Call(object):
    kind = "call"
    cost = 0

    def __init__(self, fn):
        self.fn = fn


def deadline(slot, what=""):
    def fn(S):
        print("  %s done at slot %d (deadline %d)" % (what, S.slot, slot))
        assert S.slot < slot, "%s emitted at slot %d, needed before %d" % (what, S.slot, slot)
    return Call(fn)


def mark(name):
    def fn(S):
        S.marks[name] = S.barriers
        print("  mark %s at slot %d" % (name, S.slot))
    return Call(fn)


def after_barrier(name):
    def fn(S):
        assert S.barriers > S.marks[name], "no barrier since " + name
    return Call(fn)


class Stream:
    def __init__(self, A):
        self.slot = -1
        self.vm_issued = 0
        self.barriers = 0
        self.marks = {}
        self.A = A
        self.vm = []
        self.lg = []
        self.smem = False
        self.hist = []
        self.pos = 0
        self.nops = 0
        self.count = 0

    def _raw(self, text, states=1):
        self.A(text)
        self.pos += states
        self.count += 1

    def _wait(self, vm=None, lg=None):
        parts = []
        if vm is not None and vm < len(self.vm):
            vm = min(vm, 63)
            parts.append("vmcnt(%d)" % vm)
            self.vm = self.vm[len(self.vm) - vm:] if vm else []
        if lg is not None and (lg < len(self.lg) or (self.smem and lg == 0)):
            if self.smem:
                lg = 0
            lg = min(lg, 15)
            parts.append("lgkmcnt(%d)" % lg)
            self.lg = self.lg[len(self.lg) - lg:] if lg else []
            if lg == 0:
                self.smem = False
        if parts:
            self._raw("s_waitcnt " + " ".join(parts))

    def fence(self, vm=True):
        self._wait(vm=0 if vm else None, lg=0)

    def pad(self, n=16):
        self._nop(n)

    def _nop(self, n):
        self.nops += n
        while n > 0:
            k = min(n, 16)
            self._raw("s_nop %d" % (k - 1), k)
            n -= k

    def _need(self, queue, regs):
        last = -1
        for i, o in enumerate(queue):
            if o.defs and not regs.isdisjoint(o.defs):
                last = i
        return None if last < 0 else len(queue) - 1 - last

    def _hazard(self, op):
        need = 0
        uses, defs = set(op.uses), set(op.defs)
        touched = uses | defs
        is_valu = op.kind == "valu"
        is_mem = op.kind in ("dsr", "dsw", "vld", "vst", "dma")
        for p, at in reversed(self.hist):
            dist = self.pos - at - 1
            if dist >= 20:
                break
            w = 0
            pd = set(p.defs)
            if p.kind == "mfma":
                long_, mid = (12, 10) if p.passes == 8 else (8, 6)
                if op.kind == "mfma":
                    if not pd.isdisjoint(op.srcab):
                        w = max(w, long_)
                    if not pd.isdisjoint(op.srcc) and not (op.srcc == p.defs and op.passes == p.passes):
                        w = max(w, mid)
                    if not pd.isdisjoint(op.defs) and not (op.srcc == p.defs and op.defs == p.defs):
                        w = max(w, long_)
                elif (is_valu or is_mem) and not pd.isdisjoint(touched):
                    w = max(w, long_)
                if is_valu and not set(p.srcc).isdisjoint(defs):
                    w = max(w, 7 if p.passes == 8 else 3)
            elif p.kind == "valu":
                vd = {r for r in pd if r[0] in "va" and r != "vcc"}
                sd = pd - vd
                if op.kind == "mfma" and not vd.isdisjoint(uses):
                    w = max(w, 2)
                if op.kind == "mfma" and "exec" in sd:
                    w = max(w, 4)
                if p.mn.startswith("v_dot2") and not op.mn.startswith("v_dot2") and op.kind != "salu" and not vd.isdisjoint(touched):
                    w = max(w, 3)
                if is_valu:
                    if p.trans and not op.trans and not vd.isdisjoint(uses):
                        w = max(w, 1)
                    if p.trans and op.trans and not vd.isdisjoint(uses):
                        w = max(w, 1)
                    if (op.mn.startswith("v_permlane") or op.dpp) and not vd.isdisjoint(uses):
                        w = max(w, 2)
                    if op.mn.startswith(("v_readfirstlane", "v_readlane")) and not vd.isdisjoint(uses):
                        w = max(w, 1)
                    if not sd.isdisjoint(uses):
                        w = max(w, 4 if op.mn.startswith(("v_readlane", "v_writelane")) else 2)
                if op.kind in ("vld", "vst", "dma") and not sd.isdisjoint(uses):
                    w = max(w, 5)
                if op.kind in ("salu", "smem") and not sd.isdisjoint(uses):
                    w = max(w, 1)
            elif p.kind == "vst":
                if ("x4" in p.mn or "x3" in p.mn) and defs and not set(p.uses).isdisjoint(defs):
                    w = max(w, 2)
            elif p.kind == "salu":
                if "m0" in pd and op.kind == "dma":
                    w = max(w, 1)
            need = max(need, w - dist)
        return need

    def emit(self, op, tag=None):
        if isinstance(op, str):
            op = Op(op, tag)
        if op.kind == "call":
            op.fn(self)
            return
        if op.kind == "s_barrier":
            self.barriers += 1
        if op.kind == "waitvm":
            last = -1
            for i, o in enumerate(self.vm):
                if not op.tags or o.tag in op.tags:
                    last = i
            if last >= 0:
                self._wait(vm=len(self.vm) - 1 - last)
            return
        if op.kind == "waitlg":
            last = -1
            for i, o in enumerate(self.lg):
                if not op.tags or o.tag in op.tags:
                    last = i
            if last >= 0:
                self._wait(lg=len(self.lg) - 1 - last)
            return
        touched = set(op.uses) | set(op.defs)
        nv = self._need(self.vm, touched)
        nl = self._need(self.lg, touched)
        if self.smem and any(r in touched for r in self.smem_regs):
            nl = 0
        if nv is not None or nl is not None:
            self._wait(vm=nv, lg=nl)
        h = self._hazard(op)
        if h > 0:
            self._nop(h)
        at = self.pos
        states = 1
        if op.kind == "s_nop":
            states = int(op.text.split()[1]) + 1
        self._raw(op.text, states)
        self.hist.append((op, at))
        if len(self.hist) > 40:
            self.hist = self.hist[-30:]
        if op.kind in ("dsr", "dsw"):
            self.lg.append(op)
        elif op.kind in ("vld", "vst", "dma"):
            self.vm.append(op)
            self.vm_issued += 1
            assert len(self.vm) <= 63, "too many vector-memory ops in flight for vmcnt"
        elif op.kind == "smem":
            if not self.smem:
                self.smem_regs = set()
            self.smem = True
            self.smem_regs |= set(op.defs)

    def __call__(self, text, tag=None):
        for ln in text.strip().split("\n"):
            ln = ln.split(";")[0].strip()
            if ln:
                self.emit(ln, tag)

    def need(self, regs):
        r = set(regs)
        nv, nl = self._need(self.vm, r), self._need(self.lg, r)
        if nv is not None or nl is not None:
            self._wait(vm=nv, lg=nl)

    def ops(self, ops):
        for o in ops:
            self.emit(o)

    def label(self, name):
        self.A.label(name)

    def clone(self):
        T = Stream(self.A)
        T.vm, T.lg, T.hist = list(self.vm), list(self.lg), list(self.hist)
        T.smem, T.pos = self.smem, self.pos
        T.barriers, T.marks = self.barriers, dict(self.marks)
        T.vm_issued = self.vm_issued
        if self.smem:
            T.smem_regs = set(self.smem_regs)
        return T


def O(text, tag=None):
    out = []
    for ln in text.strip().split("\n"):
        ln = ln.split(";")[0].strip()
        if ln:
            out.append(Op(ln, tag))
    return out


class Filler:
    def __init__(self):
        self.q = []
        self.gate = 0

    def barrier_since(self, name):
        def fn(S):
            self.gate = S.marks[name] + 1
        return Call(fn)

    def add(self, ops, start=0):
        for o in ops:
            self.q.append((start, o))

    def cost(self):
        return sum(self._c(o) for _, o in self.q)

    @staticmethod
    def _c(o):
        if isinstance(o, list):
            return sum(x.cost for x in o)
        return o.cost

    def pour(self, S, slot, budget):
        first = True
        while self.q:
            start, o = self.q[0]
            if start > slot or S.barriers < self.gate:
                break
            if self._c(o) > budget and not first:
                break
            if budget <= 0 and self._c(o) > 0:
                break
            first = False
            self.q.pop(0)
            if isinstance(o, list):
                S.ops(o)
            else:
                S.emit(o)
            budget -= self._c(o)
        return budget

    def hold(self, slot):
        if self.q:
            self.q[0] = (max(self.q[0][0], slot), self.q[0][1])

    def drain(self, S):
        self.pour(S, 1 << 30, 1 << 30)
```

```python
import sys, io, contextlib
sys.path.insert(0, "gen")
import k_v3 as K
K.STAMPS = sys.argv[1] if len(sys.argv) > 1 else True
base = dict(K.OPT)
def G(a, b, c):
    return dict(g_k=(a, b, c), g_tail=(a, b, c), g_e1=(a, b, c), g_q=(a, b, c))
F = dict(fine=list(range(0, 168, 8)))
V = {
 "a": dict(),
 "la3": dict(la=3),
 "kvc146": dict(kvc=146),
 "kvc154": dict(kvc=154),
 "e1_157": dict(e1=157),
 "gk28": dict(g_k=(28, 16, 16)),
}
names = []
for nm, o in V.items():
    K.OPT.clear(); K.OPT.update(base); K.OPT.update(o)
    buf = io.StringIO()
    try:
        with contextlib.redirect_stdout(buf):
            K.gen("sw_%s.s" % nm)
        names.append(nm)
        print(nm, " | ".join(l.strip() for l in buf.getvalue().split("\n") if "kv" in l or "softmax" in l or "silu" in l))
    except AssertionError as e:
        print("skip", nm, e, buf.getvalue())
open("list.txt", "w").write("\n".join(names))
```
